```python
import torch

def _softmax(x, axis=-1):
    return torch.softmax(x, dim=axis)

def _gelu(x):
    return torch.nn.functional.gelu(x, approximate='tanh')

def _silu(x):
    return torch.nn.functional.silu(x)

def _sigmoid(x):
    return torch.sigmoid(x)

def _layernorm(x, axis=-1, eps=1e-05):
    m = x.mean(dim=axis, keepdim=True)
    v = x.var(dim=axis, keepdim=True, unbiased=False)
    return (x - m) / torch.sqrt(v + eps)

def _scatter_add(tgt, idx, src, axis=0):
    return tgt.clone().index_add_(axis, idx, src)

def _segment_sum(src, seg, n):
    out = torch.zeros((n,) + src.shape[1:], dtype=src.dtype)
    return out.index_add_(0, seg, src)

def _pad(x, pw):
    flat = tuple((v for pair in reversed(pw) for v in pair))
    return torch.nn.functional.pad(x, flat)
kernel_name = 'gather_scatter__molecular_angular_painn__graph'

def setup_inputs():

    _w = lambda a: (lambda t: t.to(torch.bfloat16) if t.is_floating_point() else t)(torch.as_tensor(a))
    N, deg, D = (12500, 64, 64)
    n_rbf = max(16, 4)
    E = N * deg
    cutoff = 5.0
    freqs = (torch.arange(1, n_rbf + 1) * torch.pi / cutoff).to(float)
    return {'sv': _w((lambda *s: torch.randn(*s, dtype=torch.bfloat16) * 0.4)(N, 4, D) * 0.3), 'pos': _w((lambda *s: torch.randn(*s, dtype=torch.bfloat16) * 0.8)(N, 3) * 1.2), 'src': _w((lambda lo, hi, *s: torch.randint(lo, hi, s))(0, N, E).to(torch.int64)), 'dst': _w((lambda lo, hi, *s: torch.randint(lo, hi, s))(0, N, E).to(torch.int64)), 'freqs': _w(freqs), 'w_phi1': _w((lambda *s: torch.randn(*s, dtype=torch.bfloat16) * 3.2)(D, D) / D ** 0.5), 'w_phi2': _w((lambda *s: torch.randn(*s, dtype=torch.bfloat16) * 0.8)(D, 3 * D) / D ** 0.5), 'w_rbf': _w((lambda *s: torch.randn(*s, dtype=torch.bfloat16) * 0.8)(n_rbf, 3 * D) / n_rbf ** 0.5)}

def reference(sv, pos, src, dst, freqs, w_phi1, w_phi2, w_rbf):
    N, _, D = sv.shape
    E = src.shape[0]
    PI, cutoff = (3.141592653589793, 5.0)
    s, v = (sv[:, 0, :].clone(), sv[:, 1:, :].clone())
    r_vec = pos[src] - pos[dst]
    d = torch.sqrt((r_vec * r_vec).sum(-1) + 1e-08)
    r_hat = r_vec / d[:, None]
    rbf = torch.sin(d[:, None] * freqs[None, :]) / d[:, None]
    fcut = 0.5 * (torch.cos(PI * d / cutoff) + 1.0)
    fcut = torch.where(d < cutoff, fcut, 0.0 * d)
    Wf = rbf @ w_rbf * fcut[:, None]
    phi = (_silu(s @ w_phi1) @ w_phi2)[src]
    m = phi * Wf
    m_s, m_vv, m_vr = (m[:, :D].clone(), m[:, D:2 * D].clone(), m[:, 2 * D:].clone())
    ds = _segment_sum(m_s, dst, N)
    dv_e = m_vv[:, None, :] * v[src] + m_vr[:, None, :] * r_hat[:, :, None]
    dv = _segment_sum(dv_e.reshape(E, 3 * D), dst, N).reshape(N, 3, D)
    return sv + torch.concatenate([ds[:, None, :], dv], axis=1)
```

```python
import re

REG_RE = re.compile(r'^(-|abs\()?\s*([vsa])(\d+)\)?$')
RNG_RE = re.compile(r'^(-)?([vsa])\[(\d+):(\d+)\]$')

def regs_of(tok):
    tok = tok.strip()
    m = RNG_RE.match(tok)
    if m:
        return [(m.group(2), i) for i in range(int(m.group(3)), int(m.group(4)) + 1)]
    m = REG_RE.match(tok)
    if m:
        return [(m.group(2), int(m.group(3)))]
    if tok in ('vcc',): return [('s', 'vcc')]
    if tok in ('vcc_lo', 'vcc_hi'): return [('s', 'vcc')]
    if tok == 'exec': return [('s', 'exec')]
    if tok == 'm0': return [('s', 'm0')]
    return []

TRANS = ('v_exp_f32', 'v_log_f32', 'v_rcp_f32', 'v_rsq_f32', 'v_sqrt_f32', 'v_sin_f32', 'v_cos_f32')

class Ins:
    __slots__ = ('text', 'op', 'cls', 'vw', 'vr', 'sw', 'sr', 'dpp', 'target', 'label', 'mfma_c', 'mfma_ab', 'passes', 'nops')
    def __init__(self, text):
        self.text = text
        self.label = None; self.target = None
        self.vw = set(); self.vr = set(); self.sw = set(); self.sr = set()
        self.dpp = False; self.mfma_c = set(); self.mfma_ab = set(); self.passes = 0; self.nops = 1
        t = text.split(';')[0].strip()
        if t.endswith(':'):
            self.label = t[:-1]; self.cls = 'label'; self.op = None; return
        if t == '' or t.startswith('.'):
            self.cls = 'none'; self.op = None; return
        parts = t.split(None, 1)
        op = parts[0]; self.op = op
        rest = parts[1] if len(parts) > 1 else ''
        rest_full = rest
        rest = re.sub(r'\b(op_sel|op_sel_hi|quad_perm|neg_lo|neg_hi):\[[^\]]*\]', '', rest).strip()
        ops = [x.strip() for x in rest.split(',')] if rest else []
        mods = ''
        if ops:
            lp = ops[-1].split(None, 1)
            if len(lp) > 1 and not lp[0].startswith('abs('):
                ops[-1] = lp[0]; mods = lp[1]
        def V(toks): return set(r for k in toks for r in regs_of(k) if r[0] in 'va')
        def S(toks): return set(r for k in toks for r in regs_of(k) if r[0] == 's')
        if op.startswith('v_mfma'):
            self.cls = 'mfma'
            self.vw = V(ops[0:1]); self.mfma_ab = V(ops[1:3]); self.mfma_c = V(ops[3:4]); self.vr = self.mfma_ab | self.mfma_c
            self.passes = 8 if '32x32' in op else 4
        elif op.startswith('v_'):
            self.cls = 'valu'
            self.dpp = ('row_' in rest_full or 'quad_perm' in rest_full or 'wave_' in rest_full)
            if op.startswith('v_cmp'):
                self.sw = S(ops[0:1]); self.vr = V(ops[1:]); self.sr = S(ops[1:])
                if op.startswith('v_cmpx'): self.sw.add(('s', 'exec'))
            elif op.startswith('v_readlane') or op.startswith('v_readfirstlane'):
                self.sw = S(ops[0:1]); self.vr = V(ops[1:2]); self.sr = S(ops[2:])
            elif op.startswith('v_permlane16_swap') or op.startswith('v_permlane32_swap'):
                self.vw = V(ops[0:2]); self.vr = V(ops[0:2])
            elif op.startswith(('v_add_co', 'v_sub_co', 'v_addc_co', 'v_subb_co', 'v_subrev_co', 'v_div_scale')):
                self.vw = V(ops[0:1]); self.sw = S(ops[1:2]); self.vr = V(ops[2:]); self.sr = S(ops[2:])
            else:
                self.vw = V(ops[0:1]); self.vr = V(ops[1:]); self.sr = S(ops[1:])
                if op.startswith(('v_fmac', 'v_mac', 'v_writelane', 'v_pk_fmac', 'v_dot2c')) or self.dpp or 'sdwa' in op:
                    self.vr |= self.vw
        elif op.startswith('ds_'):
            self.cls = 'ds'
            if op.startswith(('ds_read', 'ds_bpermute', 'ds_permute', 'ds_swizzle')) or '_rtn' in op:
                self.vw = V(ops[0:1]); self.vr = V(ops[1:])
            else:
                self.vr = V(ops)
        elif op.startswith(('buffer_', 'global_')):
            self.cls = 'vmem'
            islds = re.search(r'\blds\b', mods) is not None
            if op.startswith('buffer_load') or op.startswith('global_load'):
                if islds:
                    self.vr = V(ops[0:1]); self.sr = S(ops[1:]) | {('s', 'm0')}
                else:
                    self.vw = V(ops[0:1]); self.vr = V(ops[1:2]); self.sr = S(ops[2:])
            else:
                self.vr = V(ops[0:2]); self.sr = S(ops[2:])
                if 'atomic' in op and 'sc0' in mods: self.vw = V(ops[0:1])
        elif op.startswith('s_'):
            self.cls = 'salu'
            if op in ('s_branch',) or op.startswith('s_cbranch'):
                self.target = ops[0]
                if op.startswith('s_cbranch_vcc'): self.sr = {('s', 'vcc')}
            elif op == 's_nop':
                self.nops = int(ops[0], 0) + 1
            elif op.startswith(('s_cmp', 's_bitcmp', 's_waitcnt', 's_barrier', 's_endpgm', 's_setprio', 's_sleep')):
                self.sr = S(ops)
            elif op.startswith('s_load'):
                self.cls = 'smem'; self.sw = S(ops[0:1]); self.sr = S(ops[1:2])
            else:
                self.sw = S(ops[0:1]); self.sr = S(ops[1:])
                if 'saveexec' in op: self.sw.add(('s', 'exec'))
        else:
            raise ValueError("unknown op: " + text)

def is_wide_store(ins):
    return ins.cls == 'vmem' and ('store_dwordx3' in ins.op or 'store_dwordx4' in ins.op)

def need(prod, cons):
    n = 0
    pc, cc = prod.cls, cons.cls
    if pc == 'valu':
        if cc == 'mfma' and (prod.vw & cons.vr): n = max(n, 2)
        if cc == 'valu':
            if cons.dpp and (prod.vw & cons.vr): n = max(n, 2)
            if cons.op.startswith('v_permlane') and (prod.vw & cons.vr): n = max(n, 2)
            if cons.op.startswith(('v_readlane', 'v_readfirstlane')) and (prod.vw & cons.vr): n = max(n, 1)
            if prod.sw & cons.sr:
                n = max(n, 4 if cons.op.startswith(('v_readlane', 'v_writelane')) else 2)
            if ('s', 'exec') in prod.sw:
                if cons.dpp: n = max(n, 5)
                if cons.op.startswith(('v_readlane', 'v_readfirstlane', 'v_writelane', 'v_permlane')): n = max(n, 4)
            if prod.op in TRANS and cons.op not in TRANS and (prod.vw & cons.vr): n = max(n, 1)
            if 'sdwa' in prod.op and 'dst_sel:DWORD' not in prod.text and (prod.vw & (cons.vr | cons.vw)): n = max(n, 1)
        if cc == 'vmem' and (prod.sw & cons.sr): n = max(n, 5)
        if cc == 'salu' and (prod.sw & cons.sr): n = max(n, 2)
        if cc == 'mfma' and ('s', 'exec') in prod.sw: n = max(n, 4)
    if pc == 'mfma':
        p = prod.passes
        raw = {4: 8, 8: 12}[p]; ovl = {4: 6, 8: 10}[p]; war = {4: 3, 8: 7}[p]
        if cc == 'mfma':
            if prod.vw & cons.mfma_ab: n = max(n, raw)
            if prod.vw & cons.mfma_c and prod.vw != cons.mfma_c: n = max(n, ovl)
            if (prod.vw & cons.vw) and not (prod.vw == cons.vw and cons.mfma_c == cons.vw): n = max(n, raw)
        elif cc in ('valu', 'ds', 'vmem'):
            if prod.vw & (cons.vr | cons.vw): n = max(n, raw)
            if cc == 'valu' and (prod.mfma_c & cons.vw): n = max(n, war)
            if cc in ('ds', 'vmem') and (prod.mfma_c & cons.vw): n = max(n, war)
    if pc == 'salu':
        if ('s', 'm0') in prod.sw and cc == 'vmem' and ('s', 'm0') in cons.sr: n = max(n, 1)
    if is_wide_store(prod) and cc in ('valu', 'mfma', 'ds', 'vmem') and (prod.vr & cons.vw):
        n = max(n, 2)
    return n

class Asm:
    def __init__(self):
        self.items = []
    def __call__(self, text):
        for line in text.split('\n'):
            line = line.strip()
            if line == '': continue
            self.items.append(Ins(line))
    def label(self, name):
        self.items.append(Ins(name + ':'))
    def raw(self, text):
        x = Ins('')
        x.text = text
        self.items.append(x)
    def pad_hazards(self, window=14):
        inserted = 0
        start = 0
        while True:
            items = self.items
            labels = {it.label: i for i, it in enumerate(items) if it.label}
            preds = {}
            n = len(items)
            for i, it in enumerate(items):
                if it.cls in ('label', 'none'):
                    preds.setdefault(i + 1, []).append(i)
                    continue
                if it.target is not None:
                    if it.target in labels:
                        preds.setdefault(labels[it.target], []).append(i)
                    if it.op != 's_branch':
                        preds.setdefault(i + 1, []).append(i)
                elif it.op in ('s_endpgm', 's_setpc_b64'):
                    pass
                else:
                    preds.setdefault(i + 1, []).append(i)
            fix = None
            for i in range(start, n):
                it = items[i]
                if it.cls in ('label', 'none', 'smem'): continue
                worst = 0
                stack = [(p, 0) for p in preds.get(i, [])]
                seen = {}
                while stack:
                    j, dist = stack.pop()
                    if dist >= window: continue
                    if seen.get(j, 99) <= dist: continue
                    seen[j] = dist
                    pj = items[j]
                    if pj.cls in ('label', 'none'):
                        for p in preds.get(j, []): stack.append((p, dist))
                        continue
                    nd = need(pj, it)
                    if nd > dist: worst = max(worst, nd - dist)
                    for p in preds.get(j, []): stack.append((p, dist + pj.nops))
                if worst > 0:
                    fix = (i, worst); break
            if fix is None: break
            i, w = fix
            start = i
            self.items.insert(i, Ins('s_nop %d' % (w - 1)))
            inserted += 1
        return inserted
    def text(self):
        out = []
        for it in self.items:
            if it.cls == 'label': out.append(it.text)
            else: out.append('  ' + it.text)
        return '\n'.join(out) + '\n'
```

```python
N = 12500
E = 800000
D = 64
NBN = 49
NBUCK = 256
EP = 4096
P = (E + EP - 1) // EP
WS_T0 = 0x000000
WS_T1 = 0x320000
WS_POS4 = 0x640000
WS_LUT = 0x680000
WS_WF = 0x6A0000
WS_TAB = 0x6B0000
WS_EDGES = 0x700000
WS_ACC = 0xB00000
LUT_BASE = 0x3880
LUT_TOP = 0x40A0
LUT_ROWS = LUT_TOP - LUT_BASE + 1
K1_NODE0 = P
K1_NNODE = (N + 127) // 128
K1_LUT0 = K1_NODE0 + K1_NNODE
K1_NLUT = 17
K1_WP = K1_LUT0 + K1_NLUT
K1_GRID = K1_WP + 1
KA_SV, KA_POS, KA_SRC, KA_DST, KA_FREQ, KA_W1, KA_W2, KA_WR, KA_OUT, KA_DBG, KA_WS = [8 * i for i in range(11)]

def srd(a, d, base_lo, base_hi, nbytes, add=0):
    if add:
        a(f"s_add_u32 s{d}, s{base_lo}, {hex(add)}")
        a(f"s_addc_u32 s{d+1}, s{base_hi}, 0")
    else:
        a(f"s_mov_b32 s{d}, s{base_lo}")
        a(f"s_mov_b32 s{d+1}, s{base_hi}")
    a(f"s_mov_b32 s{d+2}, {hex(nbytes)}")
    a(f"s_mov_b32 s{d+3}, 0x20000")

def rnd(a, dst, src):
    a(f"v_cvt_pk_bf16_f32 v{dst}, 0, v{src}")

def wave_scan_incl(a, v):
    for sh in (1, 2, 4, 8):
        a(f"v_add_u32_dpp v{v}, v{v}, v{v} row_shr:{sh} row_mask:0xf bank_mask:0xf bound_ctrl:0")
    a(f"v_add_u32_dpp v{v}, v{v}, v{v} row_bcast:15 row_mask:0xa bank_mask:0xf")
    a(f"v_add_u32_dpp v{v}, v{v}, v{v} row_bcast:31 row_mask:0xc bank_mask:0xf")
```

```python
from gen_common import *

def gen_k1(a):
    a.label("pn_prep_kernel")
    a(f"s_cmp_ge_u32 s2, {K1_GRID}")
    a("s_cbranch_scc1 K1_exit")
    a(f"s_load_dwordx2 s[8:9], s[0:1], {KA_WS}")
    a(f"s_cmp_lt_u32 s2, {K1_NODE0}")
    a("s_cbranch_scc1 K1_prod")
    a(f"s_cmp_lt_u32 s2, {K1_LUT0}")
    a("s_cbranch_scc1 K1_node")
    a(f"s_cmp_lt_u32 s2, {K1_WP}")
    a("s_cbranch_scc1 K1_lut")
    a("s_branch K1_wprep")

    a.label("K1_prod")
    a(f"s_load_dwordx2 s[4:5], s[0:1], {KA_SRC}")
    a(f"s_load_dwordx2 s[6:7], s[0:1], {KA_DST}")
    a("v_lshlrev_b32 v2, 2, v0")
    a("v_mov_b32 v3, 0")
    a("ds_write_b32 v2, v3")
    a("s_lshl_b32 s28, s2, 14")
    a("v_lshlrev_b32 v1, 4, v0")
    a("v_add_u32 v1, s28, v1")
    a("s_waitcnt lgkmcnt(0)")
    srd(a, 12, 4, 5, E * 4)
    srd(a, 16, 6, 7, E * 4)
    srd(a, 20, 8, 9, P * EP * 4, WS_EDGES)
    srd(a, 24, 8, 9, NBUCK * 1024, WS_TAB)
    a("s_movk_i32 s29, 0x2000")
    a("v_add_u32 v62, 0x2000, v1")
    a("buffer_load_dwordx4 v[4:7], v1, s[16:19], 0 offen")
    a("buffer_load_dwordx4 v[8:11], v62, s[16:19], 0 offen")
    a("buffer_load_dwordx4 v[12:15], v1, s[12:15], 0 offen")
    a("buffer_load_dwordx4 v[16:19], v62, s[12:15], 0 offen")
    a(f"s_mov_b32 s36, {E*4}")
    a(f"s_mov_b32 s37, {E*4 - 8192}")
    a("v_cmp_gt_u32 s[30:31], s36, v1")
    a("v_cmp_gt_u32 s[32:33], s37, v1")
    a("v_lshrrev_b32 v60, 6, v0")
    a("v_mov_b32 v61, 1")
    a("v_readfirstlane_b32 s38, v60")
    a("s_mov_b32 s39, -49")
    a("s_barrier")
    a("s_waitcnt vmcnt(2)")
    for e in range(8):
        a(f"v_mul_u32_u24 v{20+e}, 42800, v{4+e}")
        a(f"v_lshrrev_b32 v{20+e}, 21, v{20+e}")
        a(f"v_mad_i32_i24 v{28+e}, v{20+e}, s39, v{4+e}")
        a(f"v_lshlrev_b32 v{36+e}, 2, v{20+e}")
    a("s_mov_b64 s[34:35], exec")
    a("s_mov_b64 exec, s[30:31]")
    for e in range(4):
        a(f"ds_add_rtn_u32 v{44+e}, v{36+e}, v61")
    a("s_mov_b64 exec, s[32:33]")
    for e in range(4, 8):
        a(f"ds_add_rtn_u32 v{44+e}, v{36+e}, v61")
    a("s_mov_b64 exec, s[34:35]")
    a("s_waitcnt vmcnt(0)")
    for e in range(8):
        a(f"v_lshl_or_b32 v{28+e}, v{12+e}, 8, v{28+e}")
    a("s_waitcnt lgkmcnt(0)")
    a("s_barrier")
    a("s_cmp_lg_u32 s38, 0")
    a("s_cbranch_scc1 K1_prod_scan_done")
    a("v_lshlrev_b32 v62, 4, v0")
    a("ds_read_b128 v[52:55], v62")
    a("s_waitcnt lgkmcnt(0)")
    a("v_add_u32 v57, v52, v53")
    a("v_add_u32 v58, v57, v54")
    a("v_add_u32 v59, v58, v55")
    a("v_mov_b32 v56, v59")
    wave_scan_incl(a, 56)
    a("v_sub_u32 v64, v56, v59")
    a("v_add_u32 v65, v64, v52")
    a("v_add_u32 v66, v64, v57")
    a("v_add_u32 v67, v64, v58")
    a("ds_write_b128 v62, v[64:67] offset:2048")
    a("s_lshl_b32 s40, s2, 2")
    a("v_lshlrev_b32 v63, 12, v0")
    a("v_add_u32 v63, s40, v63")
    for i in range(4):
        a(f"v_lshl_or_b32 v{68+i}, v{52+i}, 16, v{64+i}")
    for i in range(4):
        a(f"buffer_store_dword v{68+i}, v63, s[24:27], 0 offen offset:{i*1024}")
    a("s_waitcnt lgkmcnt(0)")
    a.label("K1_prod_scan_done")
    a("s_barrier")
    for e in range(8):
        a(f"ds_read_b32 v{52+e}, v{36+e} offset:2048")
    a("s_waitcnt lgkmcnt(0)")
    for e in range(8):
        a(f"v_add_lshl_u32 v{52+e}, v{52+e}, v{44+e}, 2")
    a("s_mov_b64 exec, s[30:31]")
    for e in range(4):
        a(f"ds_write_b32 v{52+e}, v{28+e} offset:4096")
    a("s_mov_b64 exec, s[32:33]")
    for e in range(4, 8):
        a(f"ds_write_b32 v{52+e}, v{28+e} offset:4096")
    a("s_mov_b64 exec, s[34:35]")
    a("s_waitcnt lgkmcnt(0)")
    a("s_barrier")
    a("v_lshlrev_b32 v2, 4, v0")
    a("ds_read_b128 v[4:7], v2 offset:4096")
    a("ds_read_b128 v[8:11], v2 offset:12288")
    a("s_waitcnt lgkmcnt(1)")
    a("buffer_store_dwordx4 v[4:7], v1, s[20:23], 0 offen")
    a("s_waitcnt lgkmcnt(0)")
    a("buffer_store_dwordx4 v[8:11], v1, s[20:23], s29 offen")
    a("s_endpgm")

    a.label("K1_node")
    a(f"s_load_dwordx2 s[4:5], s[0:1], {KA_SV}")
    a(f"s_load_dwordx2 s[6:7], s[0:1], {KA_POS}")
    a(f"s_load_dwordx2 s[10:11], s[0:1], {KA_W1}")
    a(f"s_load_dwordx2 s[28:29], s[0:1], {KA_W2}")
    a(f"s_sub_u32 s45, s2, {K1_NODE0}")
    a("v_lshrrev_b32 v4, 6, v0")
    a("v_and_b32 v1, 63, v0")
    a("v_readfirstlane_b32 s44, v4")
    a("v_and_b32 v2, 15, v1")
    a("v_lshrrev_b32 v3, 4, v1")
    a("s_waitcnt lgkmcnt(0)")
    srd(a, 12, 4, 5, N * 512)
    srd(a, 16, 10, 11, 64 * 128)
    srd(a, 20, 28, 29, 64 * 384)
    srd(a, 24, 8, 9, N * 256, WS_T0)
    srd(a, 32, 8, 9, N * 256, WS_T1)
    srd(a, 36, 6, 7, N * 6)
    srd(a, 40, 8, 9, N * 16, WS_POS4)
    a("v_lshlrev_b32 v5, 4, v0")
    a("s_lshl_b32 s46, s44, 10")
    a("s_mov_b32 m0, s46")
    a("v_lshrrev_b32 v6, 3, v0")
    a("buffer_load_dwordx4 v5, s[16:19], 0 offen lds")
    a("v_mul_u32_u24 v6, 384, v6")
    a("v_and_b32 v7, 7, v0")
    a("v_lshlrev_b32 v7, 4, v7")
    a("v_add3_u32 v6, v6, v7, 64")
    a("v_add_u32 v6, 64, v6")
    a("s_add_u32 s46, s46, 8192")
    a("s_mov_b32 m0, s46")
    a("s_lshl_b32 s47, s45, 7")
    a("buffer_load_dwordx4 v6, s[20:23], 0 offen lds")
    a("s_lshl_b32 s48, s44, 4")
    a("s_add_u32 s48, s48, s47")
    a("v_add_u32 v4, s48, v2")
    a("v_lshlrev_b32 v5, 9, v4")
    a("v_lshl_add_u32 v6, v3, 4, v5")
    a("v_lshl_add_u32 v7, v3, 5, v5")
    a("buffer_load_dwordx4 v[8:11], v6, s[12:15], 0 offen")
    a("buffer_load_dwordx4 v[12:15], v6, s[12:15], 0 offen offset:64")
    for c in range(3):
        a(f"buffer_load_dwordx4 v[{16+8*c}:{19+8*c}], v7, s[12:15], 0 offen offset:{128*(1+c)}")
        a(f"buffer_load_dwordx4 v[{20+8*c}:{23+8*c}], v7, s[12:15], 0 offen offset:{128*(1+c)+16}")
    a("s_cmp_ge_u32 s44, 2")
    a("s_cbranch_scc1 K1_node_nopos")
    a("v_add_u32 v100, s47, v0")
    a("v_mul_u32_u24 v101, 6, v100")
    a("buffer_load_ushort v96, v101, s[36:39], 0 offen")
    a("buffer_load_ushort v97, v101, s[36:39], 0 offen offset:2")
    a("buffer_load_ushort v98, v101, s[36:39], 0 offen offset:4")
    a("v_mov_b32 v99, 0")
    a("v_lshlrev_b32 v100, 4, v100")
    a("s_waitcnt vmcnt(0)")
    a("v_lshlrev_b32 v96, 16, v96")
    a("v_lshlrev_b32 v97, 16, v97")
    a("v_lshlrev_b32 v98, 16, v98")
    a("buffer_store_dwordx4 v[96:99], v100, s[40:43], 0 offen")
    a.label("K1_node_nopos")
    a("v_lshrrev_b32 v5, 2, v1")
    a("v_and_b32 v5, 3, v5")
    a("v_and_b32 v6, 3, v1")
    a("v_lshlrev_b32 v6, 5, v6")
    a("v_lshl_add_u32 v7, v3, 3, v5")
    a("v_lshl_add_u32 v7, v7, 7, v6")
    a("v_lshl_add_u32 v5, v3, 4, v5")
    a("v_lshl_add_u32 v5, v5, 7, v6")
    a("v_add_u32 v5, 8192, v5")
    a("s_waitcnt vmcnt(0)")
    a("s_barrier")
    W = 40
    for t in range(4):
        for u in range(2):
            r = W + 8 * t + 4 * u
            a(f"ds_read_b64_tr_b16 v[{r}:{r+1}], v7 offset:{u*4096 + t*8}")
            a(f"ds_read_b64_tr_b16 v[{r+2}:{r+3}], v7 offset:{u*4096 + 512 + t*8}")
    a("s_waitcnt lgkmcnt(0)")
    Dr = 72
    for t in range(4):
        a(f"v_mfma_f32_16x16x32_bf16 v[{Dr+4*t}:{Dr+4*t+3}], v[{W+8*t}:{W+8*t+3}], v[8:11], 0")
    for t in range(4):
        a(f"v_mfma_f32_16x16x32_bf16 v[{Dr+4*t}:{Dr+4*t+3}], v[{W+8*t+4}:{W+8*t+7}], v[12:15], v[{Dr+4*t}:{Dr+4*t+3}]")
    a("s_nop 7")
    for t in range(4):
        for u in range(2):
            r = W + 8 * t + 4 * u
            a(f"ds_read_b64_tr_b16 v[{r}:{r+1}], v5 offset:{u*1024 + t*8}")
            a(f"ds_read_b64_tr_b16 v[{r+2}:{r+3}], v5 offset:{u*1024 + 512 + t*8}")
    a("s_mov_b32 s50, 0xbfb8aa3b")
    Hp = 88
    for t in range(4):
        for r in range(4):
            x = Dr + 4 * t + r
            rnd(a, x, x)
        for r in range(4):
            a(f"v_mul_f32 v{96+r}, s50, v{Dr+4*t+r}")
        for r in range(4):
            a(f"v_exp_f32 v{96+r}, v{96+r}")
        for r in range(4):
            a(f"v_add_f32 v{96+r}, 1.0, v{96+r}")
        for r in range(4):
            a(f"v_rcp_f32 v{96+r}, v{96+r}")
        for r in range(4):
            a(f"v_mul_f32 v{96+r}, v{Dr+4*t+r}, v{96+r}")
        a(f"v_cvt_pk_bf16_f32 v{Hp+2*t}, v96, v97")
        a(f"v_cvt_pk_bf16_f32 v{Hp+2*t+1}, v98, v99")
    a("s_waitcnt lgkmcnt(0)")
    for t in range(4):
        a(f"v_mfma_f32_16x16x32_bf16 v[{Dr+4*t}:{Dr+4*t+3}], v[{W+8*t}:{W+8*t+3}], v[{Hp}:{Hp+3}], 0")
    for t in range(4):
        a(f"v_mfma_f32_16x16x32_bf16 v[{Dr+4*t}:{Dr+4*t+3}], v[{W+8*t+4}:{W+8*t+7}], v[{Hp+4}:{Hp+7}], v[{Dr+4*t}:{Dr+4*t+3}]")
    O0, O1 = 96, 112
    for t in range(4):
        a(f"v_mov_b32 v{O0+4*t}, v{Hp+2*t}")
        a(f"v_mov_b32 v{O0+4*t+1}, v{Hp+2*t+1}")
    a("v_lshlrev_b32 v4, 8, v4")
    a("v_lshl_add_u32 v4, v3, 6, v4")
    for t in range(4):
        for r in range(4):
            rnd(a, Dr + 4 * t + r, Dr + 4 * t + r)
        for c in range(3):
            tmp = 40 + 4 * c
            for r in range(4):
                src = 16 + 8 * c + 2 * t + (r >> 1)
                if r & 1: a(f"v_and_b32 v{tmp+r}, 0xffff0000, v{src}")
                else: a(f"v_lshlrev_b32 v{tmp+r}, 16, v{src}")
            for r in range(4):
                a(f"v_mul_f32 v{tmp+r}, v{tmp+r}, v{Dr+4*t+r}")
            dst = (O0 + 4 * t + 2) if c == 0 else (O1 + 4 * t + 2 * (c - 1))
            a(f"v_cvt_pk_bf16_f32 v{dst}, v{tmp}, v{tmp+1}")
            a(f"v_cvt_pk_bf16_f32 v{dst+1}, v{tmp+2}, v{tmp+3}")
        a(f"buffer_store_dwordx4 v[{O0+4*t}:{O0+4*t+3}], v4, s[24:27], 0 offen offset:{t*16}")
        a(f"buffer_store_dwordx4 v[{O1+4*t}:{O1+4*t+3}], v4, s[32:35], 0 offen offset:{t*16}")
    a("s_endpgm")

    a.label("K1_lut")
    a(f"s_load_dwordx2 s[4:5], s[0:1], {KA_FREQ}")
    a(f"s_sub_u32 s45, s2, {K1_LUT0}")
    a("v_and_b32 v1, 15, v0")
    a("v_lshlrev_b32 v1, 1, v1")
    a("s_waitcnt lgkmcnt(0)")
    srd(a, 12, 4, 5, 32)
    srd(a, 16, 8, 9, LUT_ROWS * 32, WS_LUT)
    a("buffer_load_ushort v2, v1, s[12:15], 0 offen")
    a("s_lshl_b32 s46, s45, 7")
    a("v_lshrrev_b32 v3, 4, v0")
    a("v_add_u32 v3, s46, v3")
    a("s_mov_b32 s50, 0x3e22f983")
    a("s_mov_b32 s51, 0x40490fdb")
    a("s_mov_b32 s52, 0x3e4ccccd")
    a("s_mov_b32 s53, 0x40a00000")
    a("s_waitcnt vmcnt(0)")
    a("v_lshlrev_b32 v2, 16, v2")
    for s in range(4):
        b = 8 + 12 * s
        row, d, x, sn, rc, q, e, c1 = [b + i for i in range(8)]
        a(f"v_add_u32 v{row}, {32*s}, v3")
        a(f"v_add_u32 v{d}, {LUT_BASE}, v{row}")
        a(f"v_lshlrev_b32 v{d}, 16, v{d}")
        a(f"v_mul_f32 v{x}, v{d}, v2")
        rnd(a, x, x)
        a(f"v_mul_f32 v{x}, s50, v{x}")
        a(f"v_fract_f32 v{x}, v{x}")
        a(f"v_sin_f32 v{sn}, v{x}")
        a(f"v_rcp_f32 v{rc}, v{d}")
        rnd(a, sn, sn)
        a(f"v_mul_f32 v{q}, v{sn}, v{rc}")
        a(f"v_fma_f32 v{e}, -v{q}, v{d}, v{sn}")
        a(f"v_fma_f32 v{q}, v{e}, v{rc}, v{q}")
        rnd(a, q, q)
        a(f"v_mul_f32 v{c1}, s51, v{d}")
        rnd(a, c1, c1)
        a(f"v_mul_f32 v{x}, s52, v{c1}")
        a(f"v_fma_f32 v{e}, -v{x}, s53, v{c1}")
        a(f"v_fma_f32 v{x}, v{e}, s52, v{x}")
        rnd(a, x, x)
        a(f"v_mul_f32 v{x}, s50, v{x}")
        a(f"v_cos_f32 v{x}, v{x}")
        a("s_nop 0")
        rnd(a, x, x)
        a(f"v_add_f32 v{x}, 1.0, v{x}")
        rnd(a, x, x)
        a(f"v_mul_f32 v{x}, 0.5, v{x}")
        rnd(a, x, x)
        a(f"v_mul_f32 v{q}, v{q}, v{x}")
        rnd(a, q, q)
        a(f"v_cmp_gt_f32 vcc, s53, v{d}")
        a(f"v_cndmask_b32 v{q}, 0, v{q}, vcc")
        a(f"v_lshl_add_u32 v{row}, v{row}, 5, v1")
        a(f"buffer_store_short_d16_hi v{q}, v{row}, s[16:19], 0 offen")
    a("s_endpgm")

    a.label("K1_wprep")
    a(f"s_load_dwordx2 s[4:5], s[0:1], {KA_W2}")
    a(f"s_load_dwordx2 s[6:7], s[0:1], {KA_WR}")
    a("v_lshrrev_b32 v4, 6, v0")
    a("v_and_b32 v1, 63, v0")
    a("v_readfirstlane_b32 s44, v4")
    a("v_and_b32 v2, 15, v1")
    a("v_lshrrev_b32 v3, 4, v1")
    a("s_waitcnt lgkmcnt(0)")
    srd(a, 12, 4, 5, 64 * 384)
    srd(a, 16, 6, 7, 16 * 384)
    srd(a, 20, 8, 9, 28672, WS_WF)
    a("s_lshr_b32 s45, s44, 2")
    a("s_and_b32 s46, s44, 3")
    a("s_lshl_b32 s47, s45, 1")
    a("v_lshl_add_u32 v5, v3, 4, s47")
    a("v_mul_u32_u24 v5, 384, v5")
    a("v_lshl_add_u32 v6, v2, 2, s46")
    a("v_lshl_add_u32 v5, v6, 1, v5")
    for j in range(8):
        a(f"v_add_u32 v{8+j}, {(4*(j&3) + (j>>2))*384}, v5")
    for j in range(8):
        a(f"buffer_load_ushort v{16+j}, v{8+j}, s[12:15], 0 offen")
    for j in range(8):
        a(f"buffer_load_ushort v{24+j}, v{8+j}, s[12:15], 0 offen offset:256")
    a("v_lshlrev_b32 v7, 2, v3")
    a("v_mul_u32_u24 v7, 384, v7")
    a("v_lshl_add_u32 v7, v6, 1, v7")
    a("s_lshl_b32 s48, s45, 7")
    a("v_add_u32 v7, s48, v7")
    for r in range(4):
        a(f"buffer_load_ushort v{32+r}, v7, s[16:19], 0 offen offset:{r*384}")
    for r in range(4):
        a(f"buffer_load_ushort v{36+r}, v7, s[16:19], 0 offen offset:{r*384 + 256}")
    a("v_lshlrev_b32 v40, 4, v1")
    a("s_lshl_b32 s49, s44, 10")
    a("v_add_u32 v40, s49, v40")
    a("s_waitcnt vmcnt(0)")
    for h in range(2):
        for p in range(4):
            a(f"v_lshl_or_b32 v{44+4*h+p}, v{16+8*h+2*p+1}, 16, v{16+8*h+2*p}")
    for r in range(8):
        a(f"v_lshlrev_b32 v{32+r}, 16, v{32+r}")
    a("s_movk_i32 s50, 0x2000")
    a("s_movk_i32 s51, 0x4000")
    a("s_movk_i32 s52, 0x6000")
    a("buffer_store_dwordx4 v[44:47], v40, s[20:23], 0 offen")
    a("buffer_store_dwordx4 v[48:51], v40, s[20:23], s50 offen")
    a("buffer_store_dwordx4 v[32:35], v40, s[20:23], s51 offen")
    a("buffer_store_dwordx4 v[36:39], v40, s[20:23], s52 offen")
    a.label("K1_exit")
    a("s_endpgm")
```

```python
from gen_common import *

NBUF = 3
BATCH = 3584
NR = BATCH // 512
CAPE = 3736
FS = CAPE * 4
L_NCNT = 0
L_OWN = 256
L_F = 1280
F_SRC, F_LUT, F_RX, F_RY, F_RZ = [L_F + i * FS for i in range(5)]
L_W = L_F + 5 * FS
L_WR = L_W + 16384
L_PART = L_W + 28672
L_STAGE = L_PART + NBN * 512
L_END = L_STAGE + 8 * NBUF * 1024
L_ADDR = L_PART
ZERO4 = (CAPE - 4) * 4
OOB = 0x7fffff00
LUT_ZERO_OFF = (LUT_ROWS - 1) * 32
CW, EW = 3, 4

vN16, vC16G, vLH4, vL1X16, vTR, vL8, vZ, vNST4, vNEND4 = 1, 2, 3, 4, 5, 6, 7, 8, 9
vL16 = 15
vA0 = [10, 11, 12]
vA1 = [13, 14, 15]
vRES = [16, 18, 20]
vSO = 22
vLO = 30
vRC0, vRC1 = 0, 31
vG = [32, 36, 40, 44]
vP = [48, 52]
vGU = 56
vR = [64, 72]
vACC = 80
def H(a, t): return vACC + 16 * a + 4 * t
def TU0(t): return vACC + 64 + 4 * t
def TUY(c, t): return vACC + 16 * c + 4 * t
def Dreg(s, j, w=0): return 160 + 32 * s + 4 * j + w

sT = 12; sLUT = 16; sSV = 20; sOUT = 24; sM = 28; sM2 = 32
sT0lo, sT0hi, sT1lo, sT1hi = 36, 37, 38, 39
sW = 40; sN0 = 41; sN1 = 42
sLPH, sLN, sLE4, sLEND4, sLFIRST = 43, 44, 45, 46, 47
sINFO = [48, 49, 50]
sCUR = 51; sRET = 52
sM0 = [53, 54, 55]
sSELLO, sSELHI = 56, 57
sZERO4 = 58; sOOB = 59
sNB0 = 60; sNNODES = 61; sTOT = 62; sBLO = 63; sBN = 64
sMASK = 66
sTMP = 80

def q(r): return f"v[{r}:{r+3}]"
def d2(r): return f"v[{r}:{r+1}]"

def mfma(a, dst, A, B, first):
    c = "0" if first else q(dst)
    a(f"v_mfma_f32_16x16x32_bf16 {q(dst)}, {q(A)}, {q(B)}, {c}")

def perm_tile(a, dstq, s, tile):
    w = tile >> 1
    sel = sSELHI if (tile & 1) else sSELLO
    for p in range(4):
        a(f"v_perm_b32 v{dstq+p}, v{Dreg(s, 2*p+1, w)}, v{Dreg(s, 2*p, w)}, s{sel}")

def load_addr_part(a, s):
    a(f"s_add_u32 s{sTMP}, s{sLE4}, 64")
    a(f"v_add_u32 v{vA0[s]}, s{sLE4}, v{vC16G}")
    a(f"v_add_u32 v{vA1[s]}, s{sTMP}, v{vC16G}")
    a(f"v_add_u32 v{vLO}, s{sLE4}, v{vLH4}")
    a(f"v_cmp_gt_u32 vcc, s{sLEND4}, v{vA0[s]}")
    a(f"v_cmp_gt_u32 s[{sTMP+2}:{sTMP+3}], s{sLEND4}, v{vA1[s]}")
    a(f"v_cmp_gt_u32 s[{sTMP+4}:{sTMP+5}], s{sLEND4}, v{vLO}")
    a(f"v_cndmask_b32 v{vA0[s]}, v{vZ}, v{vA0[s]}, vcc")
    a(f"v_cndmask_b32 v{vA1[s]}, v{vZ}, v{vA1[s]}, s[{sTMP+2}:{sTMP+3}]")
    a(f"v_cndmask_b32 v{vLO}, v{vZ}, v{vLO}, s[{sTMP+4}:{sTMP+5}]")
    a(f"ds_read_b128 {q(vSO)}, v{vA0[s]} offset:{F_SRC}")
    a(f"ds_read_b128 {q(vSO+4)}, v{vA1[s]} offset:{F_SRC}")
    a(f"ds_read_b32 v{vLO}, v{vLO} offset:{F_LUT}")


def load_issue(a, s, uid, inter=None):
    inter = list(inter or [])
    def pop():
        if inter: a(inter.pop(0))
    a(f"s_add_u32 s{sTMP}, s{sLE4}, 128")
    a(f"s_cmp_ge_u32 s{sTMP}, s{sLEND4}")
    a(f"s_cselect_b32 s{sTMP+1}, 0x200, 0")
    a(f"s_lshl_b32 s{sTMP+2}, s{sLPH}, 10")
    a(f"s_or_b32 s{sTMP+2}, s{sTMP+2}, s{sLN}")
    a(f"s_or_b32 s{sTMP+2}, s{sTMP+2}, s{sLFIRST}")
    a(f"s_or_b32 s{sINFO[s]}, s{sTMP+2}, s{sTMP+1}")
    a(f"s_add_u32 s{sTMP+2}, s{sNB0}, s{sLN}")
    a(f"s_lshl_b32 s{sTMP+2}, s{sTMP+2}, 9")
    a(f"s_and_b32 s{sTMP+3}, s{sINFO[s]}, 0xe00")
    a(f"s_cmp_eq_u32 s{sTMP+3}, 0x600")
    a(f"s_cselect_b32 s{sTMP+2}, s{sTMP+2}, s{sOOB}")
    a(f"v_add_u32 v{vLO}, v{vLO}, v{vL1X16}")
    a(f"s_mov_b32 m0, s{sM0[s]}")
    a(f"v_add_u32 v{vP[0]}, s{sTMP+2}, v{vL8}")
    a(f"buffer_load_dwordx4 v{vLO}, s[{sLUT}:{sLUT+3}], 0 offen lds")
    a(f"buffer_load_dwordx2 {d2(vRES[s])}, v{vP[0]}, s[{sSV}:{sSV+3}], 0 offen")
    for j in range(8):
        a(f"v_add_u32 v{vSO+j}, v{vSO+j}, v{vN16}")
        a(f"buffer_load_dwordx4 {q(Dreg(s, j))}, v{vSO+j}, s[{sT}:{sT+3}], 0 offen")
        pop()
    while inter: pop()
    a(f"s_mov_b32 s{sLFIRST}, 0")
    a(f"s_mov_b32 s{sLE4}, s{sTMP}")
    a(f"s_cmp_eq_u32 s{sTMP+1}, 0")
    a(f"s_cbranch_scc1 ADV_done_{uid}")
    a(f"s_cmp_ge_u32 s{sLPH}, 2")
    a(f"s_cbranch_scc1 ADV_dead_{uid}")
    a(f"s_add_u32 s{sLN}, s{sLN}, 1")
    a(f"s_cmp_lt_u32 s{sLN}, s{sN1}")
    a(f"s_cbranch_scc1 ADV_node_{uid}")
    a(f"s_add_u32 s{sLPH}, s{sLPH}, 1")
    a(f"s_mov_b32 s{sLN}, s{sN0}")
    a(f"s_mov_b32 s{sT}, s{sT0lo}")
    a(f"s_mov_b32 s{sT+1}, s{sT0hi}")
    a(f"s_cmp_lt_u32 s{sLPH}, 2")
    a(f"s_cbranch_scc1 ADV_node_{uid}")
    a.label(f"ADV_dead_{uid}")
    a(f"s_mov_b32 s{sLE4}, 0")
    a(f"s_mov_b32 s{sLEND4}, 0")
    a(f"s_branch ADV_done_{uid}")
    a.label(f"ADV_node_{uid}")
    a(f"v_readlane_b32 s{sLE4}, v{vNST4}, s{sLN}")
    a(f"v_readlane_b32 s{sLEND4}, v{vNEND4}, s{sLN}")
    a(f"s_movk_i32 s{sLFIRST}, 0x100")
    a.label(f"ADV_done_{uid}")

def g_comp(a, gi, R):
    for j in range(8):
        a(f"v_mul_f32 v{R+j}, v{vGU+j}, v{R+j}")
    for p in range(4):
        a(f"v_cvt_pk_bf16_f32 v{vG[gi]+p}, v{R+2*p}, v{R+2*p+1}")

def body_x(a, s, first, uid):
    st = s * 1024
    a(f"ds_read_b64_tr_b16 {d2(vG[0])}, v{vTR} offset:{st}")
    a(f"ds_read_b64_tr_b16 {d2(vG[0]+2)}, v{vTR} offset:{st+512}")
    a(f"ds_read_b128 {q(vR[0])}, v{vA0[s]} offset:{F_RX}")
    a(f"ds_read_b128 {q(vR[0]+4)}, v{vA1[s]} offset:{F_RX}")
    a(f"ds_read_b128 {q(vR[1])}, v{vA0[s]} offset:{F_RY}")
    a(f"ds_read_b128 {q(vR[1]+4)}, v{vA1[s]} offset:{F_RY}")
    a(f"v_mov_b32 v{vRC0}, v{vRES[s]}")
    a(f"v_mov_b32 v{vRC1}, v{vRES[s]+1}")
    perm_tile(a, vP[0], s, 4)
    perm_tile(a, vP[1], s, 5)
    a("s_waitcnt lgkmcnt(4)")
    mfma(a, TU0(0), vG[0], vP[0], first)
    mfma(a, TU0(1), vG[0], vP[1], first)
    for j in range(8):
        src = vG[0] + (j >> 1)
        if j & 1: a(f"v_and_b32 v{vGU+j}, 0xffff0000, v{src}")
        else: a(f"v_lshlrev_b32 v{vGU+j}, 16, v{src}")
    perm_tile(a, vP[0], s, 6)
    perm_tile(a, vP[1], s, 7)
    a("s_waitcnt lgkmcnt(2)")
    g_comp(a, 1, vR[0])
    mfma(a, TU0(2), vG[0], vP[0], first)
    mfma(a, TU0(3), vG[0], vP[1], first)
    a(f"ds_read_b128 {q(vR[0])}, v{vA0[s]} offset:{F_RZ}")
    a(f"ds_read_b128 {q(vR[0]+4)}, v{vA1[s]} offset:{F_RZ}")
    load_addr_part(a, s)
    a("s_waitcnt lgkmcnt(5)")
    g_comp(a, 2, vR[1])
    perm_tile(a, vP[0], s, 0)
    mfma(a, H(0, 0), vP[0], vG[0], first)
    mfma(a, H(1, 0), vP[0], vG[1], first)
    mfma(a, H(2, 0), vP[0], vG[2], first)
    a("s_waitcnt lgkmcnt(3)")
    g_comp(a, 3, vR[0])
    perm_tile(a, vP[1], s, 1)
    mfma(a, H(3, 0), vP[0], vG[3], first)
    for ai in range(4): mfma(a, H(ai, 1), vP[1], vG[ai], first)
    perm_tile(a, vP[0], s, 2)
    for ai in range(4): mfma(a, H(ai, 2), vP[0], vG[ai], first)
    perm_tile(a, vP[1], s, 3)
    a("s_waitcnt lgkmcnt(0)")
    c = lambda dst: ("0" if first else q(dst))
    inter = [f"v_mfma_f32_16x16x32_bf16 {q(H(ai,3))}, {q(vP[1])}, {q(vG[ai])}, {c(H(ai,3))}" for ai in range(4)]
    load_issue(a, s, uid, inter)

def body_y(a, s, first, uid):
    st = s * 1024
    a(f"ds_read_b64_tr_b16 {d2(vG[0])}, v{vTR} offset:{st}")
    a(f"ds_read_b64_tr_b16 {d2(vG[0]+2)}, v{vTR} offset:{st+512}")
    load_addr_part(a, s)
    perm_tile(a, vP[0], s, 0)
    perm_tile(a, vP[1], s, 1)
    a("s_waitcnt lgkmcnt(3)")
    bufs = [vP[0], vP[1], vR[0], vR[0] + 4]
    mfma(a, TUY(0, 0), vG[0], bufs[0], first)
    perm_tile(a, bufs[2], s, 2)
    mfma(a, TUY(0, 1), vG[0], bufs[1], first)
    perm_tile(a, bufs[3], s, 3)
    mfma(a, TUY(0, 2), vG[0], bufs[2], first)
    perm_tile(a, bufs[0], s, 4)
    mfma(a, TUY(0, 3), vG[0], bufs[3], first)
    perm_tile(a, bufs[1], s, 5)
    mfma(a, TUY(1, 0), vG[0], bufs[0], first)
    perm_tile(a, bufs[2], s, 6)
    mfma(a, TUY(1, 1), vG[0], bufs[1], first)
    perm_tile(a, bufs[3], s, 7)
    a("s_waitcnt lgkmcnt(0)")
    c = lambda dst: ("0" if first else q(dst))
    inter = [f"v_mfma_f32_16x16x32_bf16 {q(TUY(1,2))}, {q(vG[0])}, {q(bufs[2])}, {c(TUY(1,2))}",
             f"v_mfma_f32_16x16x32_bf16 {q(TUY(1,3))}, {q(vG[0])}, {q(bufs[3])}, {c(TUY(1,3))}"]
    load_issue(a, s, uid, inter)

def epi_y(a):
    vb = vGU
    a(f"s_mov_b32 s{sTMP}, {L_WR}")
    a(f"v_lshl_add_u32 v{vb}, v{vL8}, 1, s{sTMP}")
    wv = [vG[0], vG[1], vG[2], vG[3]]
    for t in range(4):
        a(f"ds_read_b128 {q(wv[t])}, v{vb} offset:{(4+t)*1024}")
    a(f"s_and_b32 s{sTMP}, s{sCUR}, 0xff")
    a(f"s_lshl_b32 s{sTMP}, s{sTMP}, 9")
    a(f"s_add_u32 s{sTMP}, s{sTMP}, {L_PART}")
    a(f"v_lshrrev_b32 v{vGU+1}, 1, v{vC16G}")
    a(f"v_and_b32 v{vGU+2}, 8, v{vGU+1}")
    a(f"v_and_b32 v{vGU+1}, 16, v{vGU+1}")
    a(f"v_lshlrev_b32 v{vGU+1}, 4, v{vGU+1}")
    a(f"v_add3_u32 v{vGU+1}, v{vGU+1}, v{vGU+2}, v{vN16}")
    a(f"v_add_u32 v{vGU+1}, s{sTMP}, v{vGU+1}")
    O = vR[0]
    for t in range(4):
        a(f"s_waitcnt lgkmcnt({3-t})")
        for c in range(2):
            o = O + 4 * c + t
            a(f"v_mul_f32 v{o}, v{wv[t]}, v{TUY(c,t)}")
            for r in range(1, 4):
                a(f"v_fmac_f32 v{o}, v{wv[t]+r}, v{TUY(c,t)+r}")
    for t in range(4):
        a(f"v_permlane32_swap_b32 v{O+t}, v{O+4+t}")
    for t in range(4):
        a(f"v_add_f32 v{O+t}, v{O+t}, v{O+4+t}")
    for i in range(2):
        a(f"v_permlane16_swap_b32 v{O+i}, v{O+2+i}")
    for i in range(2):
        a(f"v_add_f32 v{O+i}, v{O+i}, v{O+2+i}")
    a(f"ds_write_b64 v{vGU+1}, {d2(O)}")

def epi_x(a):
    TMPS = list(range(32, 80))
    vb = vSO
    a(f"s_mov_b32 s{sTMP}, {L_W}")
    a(f"v_lshl_add_u32 v{vb}, v{vL8}, 1, s{sTMP}")
    for t in range(4):
        a(f"ds_read_b128 {q(32+4*t)}, v{vb} offset:{16384 + (4+t)*1024}")
    def setbase(k): return 32 + 24 * k
    def load_set(t):
        b = setbase(t & 1)
        a(f"ds_read_b128 {q(b)}, v{vb} offset:{(0*8+0*4+t)*1024}")
        a(f"ds_read_b128 {q(b+4)}, v{vb} offset:{(0*8+1*4+t)*1024}")
        a(f"ds_read_b128 {q(b+8)}, v{vb} offset:{(1*8+0*4+t)*1024}")
        a(f"ds_read_b128 {q(b+12)}, v{vb} offset:{(1*8+1*4+t)*1024}")
        a(f"ds_read_b128 {q(b+16)}, v{vb} offset:{16384 + (0+t)*1024}")
        a(f"ds_read_b128 {q(b+20)}, v{vb} offset:{16384 + (8+t)*1024}")
    load_set(1)
    for ai in range(4):
        for u in range(2):
            b = H(ai, 2 * u)
            a(f"v_cvt_pk_bf16_f32 v{b}, v{b}, v{b+1}")
            a(f"v_cvt_pk_bf16_f32 v{b+1}, v{b+2}, v{b+3}")
            a(f"v_cvt_pk_bf16_f32 v{b+2}, v{b+4}, v{b+5}")
            a(f"v_cvt_pk_bf16_f32 v{b+3}, v{b+6}, v{b+7}")
    def Hb(ai, u): return H(ai, 2 * u)
    def T(ai, t): return H(ai, 2 * (t & 1)) + 4
    a("s_waitcnt lgkmcnt(6)")
    for t in range(4):
        o = TU0(t)
        a(f"v_mul_f32 v{o}, v{32+4*t}, v{o}")
        for r in range(1, 4):
            a(f"v_fmac_f32 v{o}, v{32+4*t+r}, v{TU0(t)+r}")
    load_set(0)
    def O(c, t):
        if c == 1: return TU0(t)
        return TU0(t) + {0: 1, 2: 2, 3: 3}[c]
    order = [1, 0, 3, 2]
    def mm(t):
        b = setbase(t & 1)
        mfma(a, T(0, t), Hb(0, 0), b, True)
        for ai in range(1, 4): mfma(a, T(ai, t), Hb(ai, 0), b + 8, True)
        mfma(a, T(0, t), Hb(0, 1), b + 4, False)
        for ai in range(1, 4): mfma(a, T(ai, t), Hb(ai, 1), b + 12, False)
    def contr(t):
        b = setbase(t & 1)
        o = O(0, t)
        a(f"v_mul_f32 v{o}, v{b+16}, v{T(0,t)}")
        for r in range(1, 4): a(f"v_fmac_f32 v{o}, v{b+16+r}, v{T(0,t)+r}")
        for ai in range(1, 4):
            o = O(ai, t)
            if ai == 1: a(f"v_fmac_f32 v{o}, v{b+20}, v{T(ai,t)}")
            else: a(f"v_mul_f32 v{o}, v{b+20}, v{T(ai,t)}")
            for r in range(1, 4): a(f"v_fmac_f32 v{o}, v{b+20+r}, v{T(ai,t)+r}")
    a("s_waitcnt lgkmcnt(6)")
    mm(1)
    a("s_waitcnt lgkmcnt(0)")
    mm(0)
    contr(1)
    load_set(3)
    contr(0)
    load_set(2)
    a(f"s_and_b32 s{sTMP}, s{sCUR}, 0xff")
    a(f"s_lshl_b32 s{sTMP+1}, s{sTMP}, 9")
    a(f"s_add_u32 s{sTMP+1}, s{sTMP+1}, {L_PART - 512}")
    a(f"v_lshl_add_u32 v{vSO+1}, v{vC16G}, 4, v{vN16}")
    a(f"v_add_u32 v{vSO+1}, s{sTMP+1}, v{vSO+1}")
    a("s_waitcnt lgkmcnt(6)")
    mm(3)
    a("s_waitcnt lgkmcnt(0)")
    a(f"ds_read_b128 {q(vSO+4)}, v{vSO+1}")
    mm(2)
    contr(3)
    contr(2)
    for t in range(4):
        a(f"v_permlane32_swap_b32 v{O(0,t)}, v{O(2,t)}")
        a(f"v_permlane32_swap_b32 v{O(1,t)}, v{O(3,t)}")
    for t in range(4):
        a(f"v_add_f32 v{O(0,t)}, v{O(0,t)}, v{O(2,t)}")
        a(f"v_add_f32 v{O(1,t)}, v{O(1,t)}, v{O(3,t)}")
    for t in range(4):
        a(f"v_permlane16_swap_b32 v{O(0,t)}, v{O(1,t)}")
    for t in range(4):
        a(f"v_add_f32 v{O(0,t)}, v{O(0,t)}, v{O(1,t)}")
    a("s_waitcnt lgkmcnt(0)")
    a(f"s_mov_b64 s[{sTMP+2}:{sTMP+3}], exec")
    a(f"s_mov_b32 exec_lo, 0")
    for t in range(4):
        a(f"v_add_f32 v{O(0,t)}, v{O(0,t)}, v{vSO+4+t}")
    a(f"s_mov_b64 exec, s[{sTMP+2}:{sTMP+3}]")
    a(f"v_lshlrev_b32 v32, 16, v{vRC0}")
    a(f"v_and_b32 v33, 0xffff0000, v{vRC0}")
    a(f"v_lshlrev_b32 v34, 16, v{vRC1}")
    a(f"v_and_b32 v35, 0xffff0000, v{vRC1}")
    for t in range(4):
        a(f"v_add_f32 v{32+t}, v{32+t}, v{O(0,t)}")
    a(f"v_cvt_pk_bf16_f32 v36, v32, v33")
    a(f"v_cvt_pk_bf16_f32 v37, v34, v35")
    a(f"s_add_u32 s{sTMP}, s{sTMP}, s{sNB0}")
    a(f"s_lshl_b32 s{sTMP}, s{sTMP}, 9")
    a(f"buffer_store_dwordx2 v[36:37], v{vL8}, s[{sOUT}:{sOUT+3}], s{sTMP} offen")

def gen_k2(a):
    a.label("pn_main_kernel")
    a(f"s_cmp_ge_u32 s2, {NBUCK}")
    a("s_cbranch_scc1 K2_exit")
    a(f"s_load_dwordx2 s[4:5], s[0:1], {KA_SV}")
    a(f"s_load_dwordx2 s[6:7], s[0:1], {KA_OUT}")
    a(f"s_load_dwordx2 s[8:9], s[0:1], {KA_WS}")
    a("v_lshrrev_b32 v10, 6, v0")
    a("v_and_b32 v11, 63, v0")
    a(f"v_readfirstlane_b32 s{sW}, v10")
    a(f"v_and_b32 v{vN16}, 15, v11")
    a(f"v_lshlrev_b32 v{vN16}, 4, v{vN16}")
    a(f"v_lshrrev_b32 v{vC16G}, 4, v11")
    a(f"v_lshlrev_b32 v{vC16G}, 4, v{vC16G}")
    a(f"v_lshrrev_b32 v{vLH4}, 1, v11")
    a(f"v_lshlrev_b32 v{vLH4}, 2, v{vLH4}")
    a(f"v_and_b32 v{vL1X16}, 1, v11")
    a(f"v_lshlrev_b32 v{vL1X16}, 4, v{vL1X16}")
    a(f"v_lshlrev_b32 v{vL8}, 3, v11")
    a(f"v_lshlrev_b32 v{vL16}, 4, v11")
    a(f"s_mul_i32 s{sNB0}, s2, {NBN}")
    a(f"s_sub_u32 s{sNNODES}, {N}, s{sNB0}")
    a(f"s_min_u32 s{sNNODES}, s{sNNODES}, {NBN}")
    a(f"s_mov_b32 s{sSELLO}, 0x05040100")
    a(f"s_mov_b32 s{sSELHI}, 0x07060302")
    a(f"s_mov_b32 s{sZERO4}, {ZERO4}")
    a(f"s_mov_b32 s{sOOB}, {hex(OOB)}")
    a(f"s_mul_i32 s{sTMP}, s{sW}, {NBUF*1024}")
    a(f"s_add_u32 s{sTMP}, s{sTMP}, {L_STAGE}")
    for s in range(NBUF):
        a(f"s_add_u32 s{sM0[s]}, s{sTMP}, {s*1024}")
    a(f"v_lshrrev_b32 v{vTR}, 2, v11")
    a(f"v_lshlrev_b32 v{vTR}, 5, v{vTR}")
    a(f"v_and_b32 v12, 3, v11")
    a(f"v_lshl_add_u32 v{vTR}, v12, 3, v{vTR}")
    a(f"v_add_u32 v{vTR}, s{sTMP}, v{vTR}")
    a("s_waitcnt lgkmcnt(0)")
    a(f"s_add_u32 s{sT0lo}, s8, {hex(WS_T0)}")
    a(f"s_addc_u32 s{sT0hi}, s9, 0")
    a(f"s_add_u32 s{sT1lo}, s8, {hex(WS_T1)}")
    a(f"s_addc_u32 s{sT1hi}, s9, 0")
    srd(a, sLUT, 8, 9, LUT_ROWS * 32, WS_LUT)
    srd(a, sSV, 4, 5, N * 512)
    srd(a, sOUT, 6, 7, N * 512)
    a(f"s_mov_b32 s{sT+2}, {N*256}")
    a(f"s_mov_b32 s{sT+3}, 0x20000")
    a(f"s_mov_b32 s{sT}, s{sT1lo}")
    a(f"s_mov_b32 s{sT+1}, s{sT1hi}")
    a(f"s_lshl_b32 s{sTMP}, s2, 10")
    a(f"s_add_u32 s{sTMP}, s{sTMP}, {hex(WS_TAB)}")
    a(f"s_add_u32 s{sM}, s8, s{sTMP}")
    a(f"s_addc_u32 s{sM+1}, s9, 0")
    a(f"s_mov_b32 s{sM+2}, {P*4}")
    a(f"s_mov_b32 s{sM+3}, 0x20000")
    a(f"buffer_load_dwordx4 v[32:35], v{vL16}, s[{sM}:{sM+3}], 0 offen")
    srd(a, sM2, 8, 9, 28672, WS_WF)
    for i in range(4):
        a(f"s_add_u32 s{sTMP}, s{sW}, {8*i}")
        if i == 3:
            a(f"s_cmp_ge_u32 s{sTMP}, 28")
            a("s_cbranch_scc1 K2_wdone")
        a(f"s_lshl_b32 s{sTMP+1}, s{sTMP}, 10")
        a(f"s_add_u32 s{sTMP+2}, s{sTMP+1}, {L_W}")
        a(f"s_mov_b32 m0, s{sTMP+2}")
        a("s_nop 0")
        a(f"buffer_load_dwordx4 v{vL16}, s[{sM2}:{sM2+3}], s{sTMP+1} offen lds")
    a.label("K2_wdone")
    srd(a, sM2, 8, 9, N * 16, WS_POS4)
    a(f"v_add_u32 v12, s{sNB0}, v11")
    a("v_lshlrev_b32 v12, 4, v12")
    a(f"buffer_load_dwordx4 v[36:39], v12, s[{sM2}:{sM2+3}], 0 offen")
    a(f"v_lshlrev_b32 v13, 2, v11")
    a("v_mov_b32 v14, 0")
    a(f"s_mov_b32 s{sBLO}, 0")
    a(f"s_cmp_lg_u32 s{sW}, 0")
    a("s_cbranch_scc1 K2_nz")
    a(f"ds_write_b32 v13, v14 offset:{L_NCNT}")
    a("s_waitcnt vmcnt(0)")
    a(f"ds_write_b128 v{vL16}, v[36:39] offset:{L_OWN}")
    a.label("K2_nz")
    a("s_waitcnt vmcnt(0)")
    for i in range(4):
        a(f"v_lshrrev_b32 v{40+i}, 16, v{32+i}")
        a(f"v_and_b32 v{44+i}, 0xffff, v{32+i}")
    a("v_add_u32 v49, v40, v41")
    a("v_add_u32 v50, v49, v42")
    a("v_add_u32 v51, v50, v43")
    a("v_mov_b32 v48, v51")
    wave_scan_incl(a, 48)
    a(f"v_readlane_b32 s{sTOT}, v48, 63")
    a("v_sub_u32 v52, v48, v51")
    a("v_add_u32 v53, v52, v40")
    a("v_add_u32 v54, v52, v49")
    a("v_add_u32 v55, v52, v50")
    a(f"s_and_b32 s{sTMP}, s{sW}, 3")
    for i in range(1, 4):
        a(f"s_cmp_eq_u32 s{sTMP}, {i}")
        a(f"s_cselect_b64 s[{sTMP+2}:{sTMP+3}], -1, 0")
        a(f"v_cndmask_b32 v40, v40, v{40+i}, s[{sTMP+2}:{sTMP+3}]")
        a(f"v_cndmask_b32 v44, v44, v{44+i}, s[{sTMP+2}:{sTMP+3}]")
        a(f"v_cndmask_b32 v52, v52, v{52+i}, s[{sTMP+2}:{sTMP+3}]")
    a(f"v_lshl_add_u32 v56, v11, 2, s{sTMP}")
    a("v_lshlrev_b32 v56, 14, v56")
    a("v_lshl_add_u32 v56, v44, 2, v56")
    a(f"v_subrev_u32 v52, s{sBLO}, v52")
    a(f"s_sub_u32 s{sBN}, s{sTOT}, s{sBLO}")
    a(f"s_min_u32 s{sBN}, s{sBN}, {BATCH}")
    a(f"s_lshr_b32 s{sTMP}, s{sW}, 2")
    a(f"s_movk_i32 s{sTMP+1}, {BATCH}")
    a(f"s_mov_b32 s{sTMP+6}, {L_ADDR}")
    a.label("K2_exp")
    a(f"v_cmp_lt_u32 vcc, s{sTMP}, v40")
    a("s_cbranch_vccz K2_exp_done")
    a(f"v_add_u32 v57, s{sTMP}, v52")
    a(f"v_cmp_gt_u32 s[{sTMP+2}:{sTMP+3}], s{sTMP+1}, v57")
    a(f"s_and_b64 vcc, vcc, s[{sTMP+2}:{sTMP+3}]")
    a(f"s_and_saveexec_b64 s[{sTMP+4}:{sTMP+5}], vcc")
    a(f"v_lshl_add_u32 v58, v57, 2, s{sTMP+6}")
    a(f"s_lshl_b32 s{sTMP+7}, s{sTMP}, 2")
    a(f"v_add_u32 v59, s{sTMP+7}, v56")
    a("ds_write_b32 v58, v59")
    a(f"s_mov_b64 exec, s[{sTMP+4}:{sTMP+5}]")
    a(f"s_add_u32 s{sTMP}, s{sTMP}, 2")
    a("s_branch K2_exp")
    a.label("K2_exp_done")
    a("s_waitcnt lgkmcnt(0)")
    a("s_barrier")
    PAY, RANK, NODE4, SOFF, PS, PD, AD = 32, 40, 48, 56, 64, 96, 128
    a("v_lshlrev_b32 v136, 2, v0")
    a(f"v_add_u32 v136, {L_ADDR}, v136")
    for r in range(NR):
        a(f"ds_read_b32 v{AD+r}, v136 offset:{r*2048}")
    for r in range(NR):
        a(f"s_sub_i32 s{sTMP}, s{sBN}, {512*r}")
        a(f"v_cmp_gt_i32 s[{sMASK+2*r}:{sMASK+2*r+1}], s{sTMP}, v0")
    a(f"v_mov_b32 v137, s{sOOB}")
    srd(a, sM, 8, 9, P * EP * 4, WS_EDGES)
    a("s_waitcnt lgkmcnt(0)")
    for r in range(NR):
        a(f"v_cndmask_b32 v{AD+r}, v137, v{AD+r}, s[{sMASK+2*r}:{sMASK+2*r+1}]")
        a(f"buffer_load_dword v{PAY+r}, v{AD+r}, s[{sM}:{sM+3}], 0 offen")
    a("v_mov_b32 v138, 1")
    a(f"s_mov_b64 s[{sTMP+4}:{sTMP+5}], exec")
    for r in range(NR):
        a(f"s_waitcnt vmcnt({NR-1})")
        a(f"v_and_b32 v{NODE4+r}, 63, v{PAY+r}")
        a(f"v_lshlrev_b32 v{NODE4+r}, 2, v{NODE4+r}")
        a(f"v_and_b32 v{SOFF+r}, 0xffffff00, v{PAY+r}")
        a(f"v_lshrrev_b32 v{AD+r}, 4, v{SOFF+r}")
        a(f"buffer_load_dwordx3 v[{PS+4*r}:{PS+4*r+2}], v{AD+r}, s[{sM2}:{sM2+3}], 0 offen")
        a(f"s_mov_b64 exec, s[{sMASK+2*r}:{sMASK+2*r+1}]")
        a(f"ds_add_rtn_u32 v{RANK+r}, v{NODE4+r}, v138 offset:{L_NCNT}")
        a(f"s_mov_b64 exec, s[{sTMP+4}:{sTMP+5}]")
        a(f"v_lshlrev_b32 v139, 2, v{NODE4+r}")
        a(f"ds_read_b128 v[{PD+4*r}:{PD+4*r+3}], v139 offset:{L_OWN}")
    a("s_waitcnt lgkmcnt(0)")
    a("s_barrier")
    a(f"ds_read_b32 v140, v13 offset:{L_NCNT}")
    a("s_waitcnt lgkmcnt(0)")
    a("v_add_u32 v141, 3, v140")
    a("v_and_b32 v141, -4, v141")
    a("v_mov_b32 v142, v141")
    wave_scan_incl(a, 142)
    a(f"v_lshlrev_b32 v{vNEND4}, 2, v142")
    a("v_sub_u32 v143, v142, v141")
    a(f"v_lshlrev_b32 v{vNST4}, 2, v143")
    for r in range(NR):
        a(f"ds_bpermute_b32 v{AD+r}, v{NODE4+r}, v{vNST4}")
    a(f"v_mov_b32 v144, s{sOOB}")
    a(f"v_mov_b32 v145, {LUT_ZERO_OFF}")
    a("v_mov_b32 v146, 0")
    a(f"s_cmp_lg_u32 s{sW}, 0")
    a("s_cbranch_scc1 K2_nopad")
    for qd in range(3):
        a(f"v_add_u32 v147, {qd}, v140")
        a("v_cmp_lt_u32 vcc, v147, v141")
        a(f"s_and_saveexec_b64 s[{sTMP}:{sTMP+1}], vcc")
        a(f"v_lshl_add_u32 v147, v147, 2, v{vNST4}")
        a(f"ds_write_b32 v147, v144 offset:{F_SRC}")
        a(f"ds_write_b32 v147, v145 offset:{F_LUT}")
        a(f"ds_write_b32 v147, v146 offset:{F_RX}")
        a(f"ds_write_b32 v147, v146 offset:{F_RY}")
        a(f"ds_write_b32 v147, v146 offset:{F_RZ}")
        a(f"s_mov_b64 exec, s[{sTMP}:{sTMP+1}]")
    a("v_cmp_gt_u32 vcc, 4, v11")
    a(f"s_and_saveexec_b64 s[{sTMP}:{sTMP+1}], vcc")
    a(f"v_add_u32 v147, {ZERO4}, v13")
    a(f"ds_write_b32 v147, v144 offset:{F_SRC}")
    a(f"ds_write_b32 v147, v145 offset:{F_LUT}")
    a(f"ds_write_b32 v147, v146 offset:{F_RX}")
    a(f"ds_write_b32 v147, v146 offset:{F_RY}")
    a(f"ds_write_b32 v147, v146 offset:{F_RZ}")
    a(f"s_mov_b64 exec, s[{sTMP}:{sTMP+1}]")
    a.label("K2_nopad")
    a(f"s_mov_b32 s{sTMP}, 0x322bcc77")
    a(f"s_mov_b32 s{sTMP+1}, {LUT_TOP*32}")
    a(f"s_mov_b32 s{sTMP+6}, {LUT_BASE*32}")
    a("s_waitcnt vmcnt(0) lgkmcnt(0)")
    for r in range(NR):
        t = 148 + 8 * (r & 1)
        for c in range(3):
            a(f"v_sub_f32 v{t+c}, v{PS+4*r+c}, v{PD+4*r+c}")
        for c in range(3): rnd(a, t + c, t + c)
        for c in range(3):
            a(f"v_mul_f32 v{t+3+c}, v{t+c}, v{t+c}")
        for c in range(3): rnd(a, t + 3 + c, t + 3 + c)
        a(f"v_add_f32 v{t+3}, v{t+3}, v{t+4}")
        a(f"v_add_f32 v{t+3}, v{t+3}, v{t+5}")
        rnd(a, t + 3, t + 3)
        a(f"v_add_f32 v{t+3}, s{sTMP}, v{t+3}")
        rnd(a, t + 3, t + 3)
        a(f"v_sqrt_f32 v{t+3}, v{t+3}")
        a(f"v_lshl_add_u32 v{AD+r}, v{RANK+r}, 2, v{AD+r}")
        rnd(a, t + 3, t + 3)
        a(f"v_rcp_f32 v{t+4}, v{t+3}")
        a(f"v_lshrrev_b32 v{t+5}, 11, v{t+3}")
        a(f"v_min_u32 v{t+5}, s{sTMP+1}, v{t+5}")
        a(f"v_subrev_u32 v{t+5}, s{sTMP+6}, v{t+5}")
        for c in range(3):
            a(f"v_mul_f32 v{t+c}, v{t+c}, v{t+4}")
        for c in range(3): rnd(a, t + c, t + c)
        a(f"s_mov_b64 exec, s[{sMASK+2*r}:{sMASK+2*r+1}]")
        a(f"ds_write_b32 v{AD+r}, v{SOFF+r} offset:{F_SRC}")
        a(f"ds_write_b32 v{AD+r}, v{t+5} offset:{F_LUT}")
        a(f"ds_write_b32 v{AD+r}, v{t} offset:{F_RX}")
        a(f"ds_write_b32 v{AD+r}, v{t+1} offset:{F_RY}")
        a(f"ds_write_b32 v{AD+r}, v{t+2} offset:{F_RZ}")
        a(f"s_mov_b64 exec, s[{sTMP+4}:{sTMP+5}]")
    a("v_add_u32 v144, 31, v141")
    a("v_lshrrev_b32 v144, 5, v144")
    a("v_max_u32 v144, 1, v144")
    a(f"v_mul_u32_u24 v144, {CW}, v144")
    a(f"v_add_u32 v144, {EW}, v144")
    a(f"v_cmp_gt_u32 vcc, s{sNNODES}, v11")
    a("v_cndmask_b32 v144, 0, v144, vcc")
    a("v_mov_b32 v145, v144")
    wave_scan_incl(a, 145)
    a(f"v_readlane_b32 s{sTMP}, v145, 63")
    a("v_lshrrev_b32 v146, 1, v144")
    a("v_sub_u32 v145, v145, v146")
    a("v_mov_b32 v146, -1")
    a("v_cndmask_b32 v145, v146, v145, vcc")
    a(f"s_mul_i32 s{sTMP+1}, s{sTMP}, s{sW}")
    a(f"s_lshr_b32 s{sTMP+2}, s{sTMP+1}, 3")
    a(f"s_add_u32 s{sTMP+1}, s{sTMP+1}, s{sTMP}")
    a(f"s_lshr_b32 s{sTMP+3}, s{sTMP+1}, 3")
    a(f"v_cmp_gt_u32 vcc, s{sTMP+2}, v145")
    a(f"s_bcnt1_i32_b64 s{sN0}, vcc")
    a(f"s_cmp_eq_u32 s{sW}, 7")
    a(f"s_cselect_b32 s{sTMP+3}, -1, s{sTMP+3}")
    a(f"v_cmp_gt_u32 vcc, s{sTMP+3}, v145")
    a(f"s_bcnt1_i32_b64 s{sN1}, vcc")
    a(f"s_min_u32 s{sN1}, s{sN1}, s{sNNODES}")
    a("s_waitcnt lgkmcnt(0)")
    a("s_barrier")
    a(f"v_mov_b32 v{vZ}, s{sZERO4}")
    a(f"s_mov_b32 s{sLPH}, 0")
    a(f"s_mov_b32 s{sLN}, s{sN0}")
    a(f"s_movk_i32 s{sLFIRST}, 0x100")
    a(f"s_mov_b32 s{sT}, s{sT1lo}")
    a(f"s_mov_b32 s{sT+1}, s{sT1hi}")
    a(f"v_readlane_b32 s{sLE4}, v{vNST4}, s{sLN}")
    a(f"v_readlane_b32 s{sLEND4}, v{vNEND4}, s{sLN}")
    a(f"s_cmp_lt_u32 s{sN0}, s{sN1}")
    a("s_cbranch_scc1 K2_haswork")
    a(f"s_mov_b32 s{sLPH}, 2")
    a(f"s_mov_b32 s{sLE4}, 0")
    a(f"s_mov_b32 s{sLEND4}, 0")
    a.label("K2_haswork")
    for s in range(NBUF):
        load_addr_part(a, s)
        a("s_waitcnt lgkmcnt(0)")
        load_issue(a, s, f"fill{s}")
    for s in range(NBUF):
        nxt = (s + 1) % NBUF
        a.label(f"LOOP_{s}")
        a(f"s_mov_b32 s{sCUR}, s{sINFO[s]}")
        a(f"s_bitcmp1_b32 s{sCUR}, 11")
        a("s_cbranch_scc1 K2_exit")
        a(f"s_mov_b32 s{sRET}, {nxt}")
        a(f"s_waitcnt vmcnt({10*(NBUF-1)})")
        a(f"s_bitcmp1_b32 s{sCUR}, 10")
        a(f"s_cbranch_scc1 BX_{s}")
        a(f"s_bitcmp1_b32 s{sCUR}, 8")
        a(f"s_cbranch_scc1 BYF_{s}")
        body_y(a, s, False, f"yr{s}")
        a(f"s_branch BYE_{s}")
        a.label(f"BYF_{s}")
        body_y(a, s, True, f"yf{s}")
        a.label(f"BYE_{s}")
        a(f"s_bitcmp1_b32 s{sCUR}, 9")
        a("s_cbranch_scc1 EPI_Y")
        a(f"s_branch LOOP_{nxt}")
        a.label(f"BX_{s}")
        a(f"s_bitcmp1_b32 s{sCUR}, 8")
        a(f"s_cbranch_scc1 BXF_{s}")
        body_x(a, s, False, f"xr{s}")
        a(f"s_branch BXE_{s}")
        a.label(f"BXF_{s}")
        body_x(a, s, True, f"xf{s}")
        a.label(f"BXE_{s}")
        a(f"s_bitcmp1_b32 s{sCUR}, 9")
        a("s_cbranch_scc1 EPI_X")
        a(f"s_branch LOOP_{nxt}")
    a.label("EPI_Y")
    epi_y(a)
    a("s_branch EPI_RET")
    a.label("EPI_X")
    epi_x(a)
    a.label("EPI_RET")
    for s in range(1, NBUF):
        a(f"s_cmp_eq_u32 s{sRET}, {s}")
        a(f"s_cbranch_scc1 LOOP_{s}")
    a("s_branch LOOP_0")
    a.label("K2_exit")
    a("s_endpgm")
```

```python
import sys
sys.path.insert(0, 'dev')
from asmlib import Asm
from gen_common import *
import gen_k1, gen_k2

HEADER = """; PaiNN message passing (gather / scatter) for gfx950 -- generated by dev/gen.py (hand-written generator)
; @launch kernel=pn_prep_kernel grid=({g1},1,1) block=(512,1,1) lds={l1}
; @launch kernel=pn_main_kernel grid=(256,1,1) block=(512,1,1) lds={l2}
.amdgcn_target "amdgcn-amd-amdhsa--gfx950"
.text
"""
def kd(name, vgpr, sgpr):
    return f""".amdhsa_kernel {name}
  .amdhsa_next_free_vgpr {vgpr}
  .amdhsa_next_free_sgpr {sgpr}
  .amdhsa_accum_offset {((vgpr+3)//4)*4}
  .amdhsa_group_segment_fixed_size 0
  .amdhsa_kernarg_size 88
  .amdhsa_user_sgpr_count 2
  .amdhsa_user_sgpr_kernarg_segment_ptr 1
  .amdhsa_system_sgpr_workgroup_id_x 1
.end_amdhsa_kernel
"""
def main(out):
    a1 = Asm(); gen_k1.gen_k1(a1); n1 = a1.pad_hazards()
    a2 = Asm(); gen_k2.gen_k2(a2); n2 = a2.pad_hazards()
    txt = HEADER.format(g1=K1_GRID, l1=20480, l2=gen_k2.L_END)
    txt += ".globl pn_prep_kernel\n.p2align 8\n.type pn_prep_kernel,@function\n" + a1.text()
    txt += ".globl pn_main_kernel\n.p2align 8\n.type pn_main_kernel,@function\n" + a2.text()
    txt += '.section .rodata,"a"\n.p2align 6\n' + kd("pn_prep_kernel", 128, 64) + '.p2align 6\n' + kd("pn_main_kernel", 256, 96)
    open(out, 'w').write(txt)
    print("nops inserted", n1, n2, "instrs", len(a1.items), len(a2.items), "LDS", gen_k2.L_END)
if __name__ == '__main__':
    main(sys.argv[1] if len(sys.argv) > 1 else 'gather_scatter__molecular_angular_painn__graph.s')
```

```python
from gen_common import *
import os
K1ST = os.environ.get('PN_K1ST', '')
K1STP = os.environ.get('PN_K1STP', '')
K1X = os.environ.get('PN_K1X', '').split(',')
K1_LDS = 32768

def gen_k1(a):
    a.label("pn_prep_kernel")
    a(f"s_cmp_ge_u32 s2, {K1_GRID}")
    a("s_cbranch_scc1 K1_exit")
    a(f"s_load_dwordx2 s[8:9], s[0:1], {KA_WS}")
    if DEBUG:
        for i in range(8): a(f"s_mov_b32 s{88+i}, 0")
        stamp(a, 0)
    a(f"s_cmp_lt_u32 s2, {K1_PROD0}")
    a("s_cbranch_scc1 K1_node")
    a(f"s_cmp_lt_u32 s2, {K1_LUT0}")
    a("s_cbranch_scc1 K1_prod")
    a(f"s_cmp_lt_u32 s2, {K1_POS0}")
    a("s_cbranch_scc1 K1_lut")
    a(f"s_cmp_lt_u32 s2, {K1_WP}")
    a("s_cbranch_scc1 K1_pos")
    a("s_branch K1_wprep")

    a.label("K1_node")
    a(f"s_load_dwordx2 s[4:5], s[0:1], {KA_SV}")
    a(f"s_load_dwordx4 s[28:31], s[0:1], {KA_W1}")
    a("v_lshrrev_b32 v4, 6, v0")
    a("v_and_b32 v1, 63, v0")
    a("v_readfirstlane_b32 s44, v4")
    a("v_and_b32 v2, 15, v1")
    a("v_lshrrev_b32 v3, 4, v1")
    a("s_lshl_b32 s47, s2, 6")
    a("v_lshlrev_b32 v5, 4, v0")
    a("v_lshrrev_b32 v6, 3, v0")
    a("v_mul_u32_u24 v6, 384, v6")
    a("v_and_b32 v7, 7, v0")
    a("v_lshlrev_b32 v7, 4, v7")
    a("v_add3_u32 v6, v6, v7, 64")
    a("v_add_u32 v6, 64, v6")
    a("s_lshl_b32 s48, s44, 4")
    a("s_add_u32 s48, s48, s47")
    a("v_add_u32 v4, s48, v2")
    a("s_lshl_b32 s46, s44, 10")
    a("s_waitcnt lgkmcnt(0)")
    srd(a, 12, 4, 5, N * 512)
    srd(a, 16, 28, 29, 64 * 128)
    srd(a, 20, 30, 31, 64 * 384)
    a("v_lshlrev_b32 v40, 9, v4")
    a("v_lshl_add_u32 v41, v3, 4, v40")
    a("v_lshl_add_u32 v42, v3, 5, v40")
    a("buffer_load_dwordx4 v[8:11], v41, s[12:15], 0 offen")
    a("buffer_load_dwordx4 v[12:15], v41, s[12:15], 0 offen offset:64")
    a("s_mov_b32 m0, s46")
    a("s_movk_i32 s49, 0x1000")
    a("buffer_load_dwordx4 v5, s[16:19], 0 offen lds")
    a("s_add_u32 s46, s46, 4096")
    a("s_mov_b32 m0, s46")
    a("s_add_u32 s46, s46, 4096")
    a("buffer_load_dwordx4 v5, s[16:19], s49 offen lds")
    a("s_mov_b32 m0, s46")
    a("s_movk_i32 s49, 0x3000")
    a("buffer_load_dwordx4 v6, s[20:23], 0 offen lds")
    a("s_add_u32 s46, s46, 4096")
    a("s_mov_b32 m0, s46")
    a("s_nop 0")
    a("buffer_load_dwordx4 v6, s[20:23], s49 offen lds")
    for c in range(3):
        a(f"buffer_load_dwordx4 v[{16+8*c}:{19+8*c}], v42, s[12:15], 0 offen offset:{128*(1+c)}")
        a(f"buffer_load_dwordx4 v[{20+8*c}:{23+8*c}], v42, s[12:15], 0 offen offset:{128*(1+c)+16}")
    srd(a, 24, 8, 9, N * 256, WS_T0)
    srd(a, 32, 8, 9, N * 256, WS_T1)
    a("v_lshrrev_b32 v5, 2, v1")
    a("v_and_b32 v5, 3, v5")
    a("v_and_b32 v6, 3, v1")
    a("v_lshlrev_b32 v6, 5, v6")
    a("v_lshl_add_u32 v7, v3, 3, v5")
    a("v_lshl_add_u32 v7, v7, 7, v6")
    a("v_lshl_add_u32 v5, v3, 4, v5")
    a("v_lshl_add_u32 v5, v5, 7, v6")
    a("v_add_u32 v5, 8192, v5")
    a("s_waitcnt vmcnt(6)")
    stamp(a, 1)
    a("s_barrier")
    stamp(a, 2)
    W, W2, Dr, Hp = 40, 72, 104, 120
    for t in range(4):
        for u in range(2):
            r = W + 8 * t + 4 * u
            a(f"ds_read_b64_tr_b16 v[{r}:{r+1}], v7 offset:{u*4096 + t*8}")
            a(f"ds_read_b64_tr_b16 v[{r+2}:{r+3}], v7 offset:{u*4096 + 512 + t*8}")
    a("s_waitcnt lgkmcnt(8)")
    for t in range(2):
        for u in range(2):
            pass
    for t in range(4):
        if t == 2: a("s_waitcnt lgkmcnt(0)")
        a(f"v_mfma_f32_16x16x32_bf16 v[{Dr+4*t}:{Dr+4*t+3}], v[{W+8*t}:{W+8*t+3}], v[8:11], 0")
        a(f"v_mfma_f32_16x16x32_bf16 v[{Dr+4*t}:{Dr+4*t+3}], v[{W+8*t+4}:{W+8*t+7}], v[12:15], v[{Dr+4*t}:{Dr+4*t+3}]")
    for t in range(4):
        for u in range(2):
            r = W2 + 8 * t + 4 * u
            a(f"ds_read_b64_tr_b16 v[{r}:{r+1}], v5 offset:{u*1024 + t*8}")
            a(f"ds_read_b64_tr_b16 v[{r+2}:{r+3}], v5 offset:{u*1024 + 512 + t*8}")
    a("s_mov_b32 s50, 0xbfb8aa3b")
    T = 40
    for t in range(4):
        for r in range(4): rnd(a, Dr + 4 * t + r, Dr + 4 * t + r)
    for i in range(16): a(f"v_mul_f32 v{T+i}, s50, v{Dr+i}")
    for i in range(16): a(f"v_exp_f32 v{T+i}, v{T+i}")
    for i in range(16): a(f"v_add_f32 v{T+i}, 1.0, v{T+i}")
    for i in range(16): a(f"v_rcp_f32 v{T+i}, v{T+i}")
    for i in range(16): a(f"v_mul_f32 v{T+i}, v{Dr+i}, v{T+i}")
    for t in range(4):
        a(f"v_cvt_pk_bf16_f32 v{Hp+2*t}, v{T+4*t}, v{T+4*t+1}")
        a(f"v_cvt_pk_bf16_f32 v{Hp+2*t+1}, v{T+4*t+2}, v{T+4*t+3}")
    a("s_waitcnt lgkmcnt(0)")
    for t in range(4):
        a(f"v_mfma_f32_16x16x32_bf16 v[{Dr+4*t}:{Dr+4*t+3}], v[{W2+8*t}:{W2+8*t+3}], v[{Hp}:{Hp+3}], 0")
        a(f"v_mfma_f32_16x16x32_bf16 v[{Dr+4*t}:{Dr+4*t+3}], v[{W2+8*t+4}:{W2+8*t+7}], v[{Hp+4}:{Hp+7}], v[{Dr+4*t}:{Dr+4*t+3}]")
    a("s_lshl_b32 s51, s44, 12")
    a("s_add_u32 s51, s51, 16384")
    a("v_lshlrev_b32 v5, 4, v2")
    a("v_lshl_add_u32 v6, v2, 8, s51")
    for t in range(4):
        a(f"v_lshl_add_u32 v{56+t}, v3, 6, {16*t}")
        a(f"v_xor_b32 v{56+t}, v{56+t}, v5")
        a(f"v_add_u32 v{56+t}, v{56+t}, v6")
    for i in range(4):
        a(f"v_add_u32 v{60+i}, {4*i}, v3")
        a(f"v_lshlrev_b32 v64, 4, v{60+i}")
        a(f"v_xor_b32 v64, v64, v5")
        a(f"v_lshl_add_u32 v{60+i}, v{60+i}, 8, v64")
        a(f"v_add_u32 v{60+i}, s51, v{60+i}")
    a("s_lshl_b32 s52, s48, 8")
    a("v_lshl_add_u32 v65, v3, 8, v5")
    a("v_add_u32 v65, s52, v65")
    O0, O1 = 72, 88
    a("s_waitcnt vmcnt(0)")
    for t in range(4):
        pass
    for t in range(4):
        for r in range(4): rnd(a, Dr + 4 * t + r, Dr + 4 * t + r)
    for t in range(4):
        a(f"v_mov_b32 v{O0+4*t}, v{Hp+2*t}")
        a(f"v_mov_b32 v{O0+4*t+1}, v{Hp+2*t+1}")
    def ucomp(c):
        for t in range(4):
            tmp = 40 + 4 * (t & 1)
            for r in range(4):
                src = 16 + 8 * c + 2 * t + (r >> 1)
                if r & 1: a(f"v_and_b32 v{tmp+r}, 0xffff0000, v{src}")
                else: a(f"v_lshlrev_b32 v{tmp+r}, 16, v{src}")
            for r in range(4):
                a(f"v_mul_f32 v{tmp+r}, v{tmp+r}, v{Dr+4*t+r}")
            dst = (O0 + 4 * t + 2) if c == 0 else (O1 + 4 * t + 2 * (c - 1))
            a(f"v_cvt_pk_bf16_f32 v{dst}, v{tmp}, v{tmp+1}")
            a(f"v_cvt_pk_bf16_f32 v{dst+1}, v{tmp+2}, v{tmp+3}")
    fl = (' ' + K1ST) if K1ST else ''
    ucomp(0)
    for t in range(4): a(f"ds_write_b128 v{56+t}, v[{O0+4*t}:{O0+4*t+3}]")
    ucomp(1)
    a("s_waitcnt lgkmcnt(0)")
    for i in range(4): a(f"ds_read_b128 v[{O0+4*i}:{O0+4*i+3}], v{60+i}")
    ucomp(2)
    a("s_waitcnt lgkmcnt(0)")
    if 'not0' not in K1X:
        for i in range(4): a(f"buffer_store_dwordx4 v[{O0+4*i}:{O0+4*i+3}], v65, s[24:27], 0 offen offset:{i*1024}{fl}")
    for t in range(4): a(f"ds_write_b128 v{56+t}, v[{O1+4*t}:{O1+4*t+3}]")
    a("s_waitcnt lgkmcnt(0)")
    for i in range(4): a(f"ds_read_b128 v[{O1+4*i}:{O1+4*i+3}], v{60+i}")
    a("s_waitcnt lgkmcnt(0)")
    if 'not1' not in K1X:
        for i in range(4): a(f"buffer_store_dwordx4 v[{O1+4*i}:{O1+4*i+3}], v65, s[32:35], 0 offen offset:{i*1024}{fl}")
    stamp(a, 4)
    if DEBUG: a("s_waitcnt vmcnt(0)")
    stamp(a, 5)
    stamp_flush(a, 0, 44)
    a("s_endpgm")

    a.label("K1_prod")
    a(f"s_load_dwordx4 s[4:7], s[0:1], {KA_SRC}")
    a(f"s_sub_u32 s41, s2, {K1_PROD0}")
    a("v_lshlrev_b32 v2, 2, v0")
    a("v_mov_b32 v3, 0")
    a("ds_write_b32 v2, v3")
    a("s_lshl_b32 s28, s41, 13")
    a("v_lshlrev_b32 v1, 4, v0")
    a("v_add_u32 v1, s28, v1")
    a("v_add_u32 v62, 0x1000, v1")
    a("s_waitcnt lgkmcnt(0)")
    srd(a, 16, 6, 7, E * 4)
    srd(a, 12, 4, 5, E * 4)
    a("buffer_load_dwordx4 v[4:7], v1, s[16:19], 0 offen")
    a("buffer_load_dwordx4 v[8:11], v62, s[16:19], 0 offen")
    a("buffer_load_dwordx4 v[12:15], v1, s[12:15], 0 offen")
    a("buffer_load_dwordx4 v[16:19], v62, s[12:15], 0 offen")
    srd(a, 20, 8, 9, P * EP * 4, WS_EDGES)
    srd(a, 24, 8, 9, NBUCK * TABROW, WS_TAB)
    a(f"s_mov_b32 s36, {E*4}")
    a("v_cmp_gt_u32 s[30:31], s36, v1")
    a("v_cmp_gt_u32 s[32:33], s36, v62")
    a("v_lshrrev_b32 v60, 6, v0")
    a("v_mov_b32 v61, 1")
    a("v_readfirstlane_b32 s38, v60")
    a("s_mov_b32 s39, -49")
    a("s_barrier")
    a("s_waitcnt vmcnt(2)")
    stamp(a, 1)
    for e in range(8):
        a(f"v_mul_u32_u24 v{20+e}, 42800, v{4+e}")
        a(f"v_lshrrev_b32 v{20+e}, 21, v{20+e}")
        a(f"v_lshlrev_b32 v{36+e}, 2, v{20+e}")
    a("s_mov_b64 s[34:35], exec")
    a("s_mov_b64 exec, s[30:31]")
    for e in range(4): a(f"ds_add_rtn_u32 v{44+e}, v{36+e}, v61")
    a("s_mov_b64 exec, s[32:33]")
    for e in range(4, 8): a(f"ds_add_rtn_u32 v{44+e}, v{36+e}, v61")
    a("s_mov_b64 exec, s[34:35]")
    for e in range(8):
        a(f"v_mad_i32_i24 v{28+e}, v{20+e}, s39, v{4+e}")
    a("s_waitcnt vmcnt(0)")
    for e in range(8):
        a(f"v_lshl_or_b32 v{28+e}, v{12+e}, 8, v{28+e}")
    a("s_waitcnt lgkmcnt(0)")
    a("s_barrier")
    stamp(a, 2)
    a("s_cmp_lg_u32 s38, 0")
    a("s_cbranch_scc1 K1_prod_scan_done")
    a("v_lshlrev_b32 v62, 4, v0")
    a("ds_read_b128 v[52:55], v62")
    a("s_waitcnt lgkmcnt(0)")
    a("v_add_u32 v57, v52, v53")
    a("v_add_u32 v58, v57, v54")
    a("v_add_u32 v59, v58, v55")
    a("v_mov_b32 v56, v59")
    wave_scan_incl(a, 56)
    a("v_sub_u32 v64, v56, v59")
    a("v_add_u32 v65, v64, v52")
    a("v_add_u32 v66, v64, v57")
    a("v_add_u32 v67, v64, v58")
    a("ds_write_b128 v62, v[64:67] offset:1024")
    a("s_lshl_b32 s40, s41, 2")
    a("v_lshlrev_b32 v63, 13, v0")
    a("v_add_u32 v63, s40, v63")
    a("v_add_u32 v72, 0x1000, v63")
    for i in range(4):
        a(f"v_lshl_or_b32 v{68+i}, v{52+i}, 16, v{64+i}")
    flp = (' ' + K1STP) if K1STP else ''
    a(f"buffer_store_dword v68, v63, s[24:27], 0 offen{flp}")
    a(f"buffer_store_dword v69, v63, s[24:27], 0 offen offset:2048{flp}")
    a(f"buffer_store_dword v70, v72, s[24:27], 0 offen{flp}")
    a(f"buffer_store_dword v71, v72, s[24:27], 0 offen offset:2048{flp}")
    a("s_waitcnt lgkmcnt(0)")
    a.label("K1_prod_scan_done")
    a("s_barrier")
    stamp(a, 3)
    for e in range(8): a(f"ds_read_b32 v{52+e}, v{36+e} offset:1024")
    a("s_waitcnt lgkmcnt(0)")
    for e in range(8): a(f"v_add_lshl_u32 v{52+e}, v{52+e}, v{44+e}, 2")
    a("s_mov_b64 exec, s[30:31]")
    for e in range(4): a(f"ds_write_b32 v{52+e}, v{28+e} offset:2048")
    a("s_mov_b64 exec, s[32:33]")
    for e in range(4, 8): a(f"ds_write_b32 v{52+e}, v{28+e} offset:2048")
    a("s_mov_b64 exec, s[34:35]")
    a("s_waitcnt lgkmcnt(0)")
    a("s_barrier")
    a("v_lshlrev_b32 v2, 4, v0")
    a("ds_read_b128 v[4:7], v2 offset:2048")
    a("ds_read_b128 v[8:11], v2 offset:6144")
    a("v_add_u32 v62, 0x1000, v1")
    a("s_waitcnt lgkmcnt(1)")
    a(f"buffer_store_dwordx4 v[4:7], v1, s[20:23], 0 offen{flp}")
    a("s_waitcnt lgkmcnt(0)")
    a(f"buffer_store_dwordx4 v[8:11], v62, s[20:23], 0 offen{flp}")
    stamp(a, 4)
    if DEBUG: a("s_waitcnt vmcnt(0)")
    stamp(a, 5)
    stamp_flush(a, 0, 38)
    a("s_endpgm")

    a.label("K1_lut")
    a(f"s_load_dwordx2 s[4:5], s[0:1], {KA_FREQ}")
    a(f"s_sub_u32 s45, s2, {K1_LUT0}")
    a("v_and_b32 v1, 15, v0")
    a("v_lshlrev_b32 v1, 1, v1")
    a("s_waitcnt lgkmcnt(0)")
    srd(a, 12, 4, 5, 32)
    srd(a, 16, 8, 9, LUT_ROWS * 32, WS_LUT)
    a("buffer_load_ushort v2, v1, s[12:15], 0 offen")
    a("s_lshl_b32 s46, s45, 6")
    a("v_lshrrev_b32 v3, 4, v0")
    a("v_add_u32 v3, s46, v3")
    a("s_mov_b32 s50, 0x3e22f983")
    a("s_mov_b32 s51, 0x40490fdb")
    a("s_mov_b32 s52, 0x3e4ccccd")
    a("s_mov_b32 s53, 0x40a00000")
    a("s_waitcnt vmcnt(0)")
    a("v_lshlrev_b32 v2, 16, v2")
    for s in range(4):
        b = 8 + 12 * s
        row, d, x, sn, rc, q, e, c1 = [b + i for i in range(8)]
        a(f"v_add_u32 v{row}, {16*s}, v3")
        a(f"v_add_u32 v{d}, {LUT_BASE}, v{row}")
        a(f"v_lshlrev_b32 v{d}, 16, v{d}")
        a(f"v_mul_f32 v{x}, v{d}, v2")
        rnd(a, x, x)
        a(f"v_mul_f32 v{x}, s50, v{x}")
        a(f"v_fract_f32 v{x}, v{x}")
        a(f"v_sin_f32 v{sn}, v{x}")
        a(f"v_rcp_f32 v{rc}, v{d}")
        rnd(a, sn, sn)
        a(f"v_mul_f32 v{q}, v{sn}, v{rc}")
        a(f"v_fma_f32 v{e}, -v{q}, v{d}, v{sn}")
        a(f"v_fma_f32 v{q}, v{e}, v{rc}, v{q}")
        rnd(a, q, q)
        a(f"v_mul_f32 v{c1}, s51, v{d}")
        rnd(a, c1, c1)
        a(f"v_mul_f32 v{x}, s52, v{c1}")
        a(f"v_fma_f32 v{e}, -v{x}, s53, v{c1}")
        a(f"v_fma_f32 v{x}, v{e}, s52, v{x}")
        rnd(a, x, x)
        a(f"v_mul_f32 v{x}, s50, v{x}")
        a(f"v_cos_f32 v{x}, v{x}")
        a("s_nop 0")
        rnd(a, x, x)
        a(f"v_add_f32 v{x}, 1.0, v{x}")
        rnd(a, x, x)
        a(f"v_mul_f32 v{x}, 0.5, v{x}")
        rnd(a, x, x)
        a(f"v_mul_f32 v{q}, v{q}, v{x}")
        rnd(a, q, q)
        a(f"v_cmp_gt_f32 vcc, s53, v{d}")
        a(f"v_cndmask_b32 v{q}, 0, v{q}, vcc")
        a(f"v_lshl_add_u32 v{row}, v{row}, 5, v1")
        a(f"buffer_store_short_d16_hi v{q}, v{row}, s[16:19], 0 offen")
    if DEBUG:
        a("s_waitcnt vmcnt(0)")
        a("v_lshrrev_b32 v4, 6, v0")
        a("s_nop 1")
        a("v_readfirstlane_b32 s44, v4")
    stamp(a, 5)
    stamp_flush(a, 0, 44)
    a("s_endpgm")

    a.label("K1_pos")
    a(f"s_load_dwordx2 s[6:7], s[0:1], {KA_POS}")
    a(f"s_sub_u32 s45, s2, {K1_POS0}")
    a("s_lshl_b32 s47, s45, 8")
    a("v_add_u32 v4, s47, v0")
    a("v_mul_u32_u24 v5, 6, v4")
    a("s_waitcnt lgkmcnt(0)")
    srd(a, 36, 6, 7, N * 6)
    srd(a, 40, 8, 9, N * 16, WS_POS4)
    a("buffer_load_ushort v8, v5, s[36:39], 0 offen")
    a("buffer_load_ushort v9, v5, s[36:39], 0 offen offset:2")
    a("buffer_load_ushort v10, v5, s[36:39], 0 offen offset:4")
    a("v_mov_b32 v11, 0")
    a("v_lshlrev_b32 v4, 4, v4")
    a("s_waitcnt vmcnt(0)")
    a("v_lshlrev_b32 v8, 16, v8")
    a("v_lshlrev_b32 v9, 16, v9")
    a("v_lshlrev_b32 v10, 16, v10")
    a("buffer_store_dwordx4 v[8:11], v4, s[40:43], 0 offen")
    if DEBUG:
        a("s_waitcnt vmcnt(0)")
        a("v_lshrrev_b32 v4, 6, v0")
        a("s_nop 1")
        a("v_readfirstlane_b32 s44, v4")
    stamp(a, 5)
    stamp_flush(a, 0, 44)
    a("s_endpgm")

    a.label("K1_wprep")
    a(f"s_load_dwordx4 s[4:7], s[0:1], {KA_W2}")
    a("v_lshrrev_b32 v4, 6, v0")
    a("v_and_b32 v1, 63, v0")
    a("v_readfirstlane_b32 s44, v4")
    a("v_and_b32 v2, 15, v1")
    a("v_lshrrev_b32 v3, 4, v1")
    a(f"s_sub_u32 s45, s2, {K1_WP}")
    a("s_lshl_b32 s45, s45, 2")
    a("s_add_u32 s45, s45, s44")
    a("s_waitcnt lgkmcnt(0)")
    srd(a, 12, 4, 5, 64 * 384)
    srd(a, 16, 6, 7, 16 * 384)
    srd(a, 20, 8, 9, 28672, WS_WF)
    a("v_lshlrev_b32 v40, 4, v1")
    a("s_lshl_b32 s49, s45, 10")
    a("v_add_u32 v40, s49, v40")
    a("s_and_b32 s46, s45, 3")
    a("v_lshl_add_u32 v6, v2, 2, s46")
    a("s_cmp_ge_u32 s45, 16")
    a("s_cbranch_scc1 K1_wp_rbf")
    a("s_bfe_u32 s47, s45, 0x10002")
    a("s_lshl_b32 s47, s47, 1")
    a("s_lshr_b32 s48, s45, 3")
    a("s_lshl_b32 s48, s48, 8")
    a("v_lshl_add_u32 v5, v3, 4, s47")
    a("v_mul_u32_u24 v5, 384, v5")
    a("v_lshl_add_u32 v5, v6, 1, v5")
    a("v_add_u32 v5, s48, v5")
    for j in range(8): a(f"v_add_u32 v{8+j}, {(4*(j&3) + (j>>2))*384}, v5")
    for j in range(8): a(f"buffer_load_ushort v{16+j}, v{8+j}, s[12:15], 0 offen")
    a("s_waitcnt vmcnt(0)")
    for p in range(4): a(f"v_lshl_or_b32 v{44+p}, v{16+2*p+1}, 16, v{16+2*p}")
    a("buffer_store_dwordx4 v[44:47], v40, s[20:23], 0 offen")
    a("s_branch K1_wp_done")
    a.label("K1_wp_rbf")
    a("s_sub_u32 s47, s45, 16")
    a("s_lshr_b32 s47, s47, 2")
    a("s_lshl_b32 s47, s47, 7")
    a("v_lshlrev_b32 v7, 2, v3")
    a("v_mul_u32_u24 v7, 384, v7")
    a("v_lshl_add_u32 v7, v6, 1, v7")
    a("v_add_u32 v7, s47, v7")
    for r in range(4): a(f"buffer_load_ushort v{32+r}, v7, s[16:19], 0 offen offset:{r*384}")
    a("s_waitcnt vmcnt(0)")
    for r in range(4): a(f"v_lshlrev_b32 v{32+r}, 16, v{32+r}")
    a("buffer_store_dwordx4 v[32:35], v40, s[20:23], 0 offen")
    a.label("K1_wp_done")
    if DEBUG: a("s_waitcnt vmcnt(0)")
    stamp(a, 5)
    stamp_flush(a, 0, 44)
    a.label("K1_exit")
    a("s_endpgm")
```

```python
N = 12500
E = 800000
D = 64
NBN = 49
NBUCK = 256
EP = 2048
P = (E + EP - 1) // EP
TABROW = 2048
WS_T0 = 0x000000
WS_T1 = 0x320000
WS_POS4 = 0x640000
WS_LUT = 0x680000
WS_WF = 0x6A0000
WS_TAB = 0x700000
WS_EDGES = 0x800000
WS_ACC = 0xC00000
LUT_BASE = 0x3880
LUT_TOP = 0x40A0
LUT_ROWS = LUT_TOP - LUT_BASE + 1
K1_NNODE = (N + 63) // 64
K1_NODE0 = 0
K1_PROD0 = K1_NNODE
K1_LUT0 = K1_PROD0 + P
K1_NLUT = 33
K1_POS0 = K1_LUT0 + K1_NLUT
K1_NPOS = 0
K1_WP = K1_POS0 + K1_NPOS
K1_NWP = 7
K1_GRID = K1_WP + K1_NWP
KA_SV, KA_POS, KA_SRC, KA_DST, KA_FREQ, KA_W1, KA_W2, KA_WR, KA_OUT, KA_DBG, KA_WS = [8 * i for i in range(11)]

def srd(a, d, base_lo, base_hi, nbytes, add=0):
    if add:
        a(f"s_add_u32 s{d}, s{base_lo}, {hex(add)}")
        a(f"s_addc_u32 s{d+1}, s{base_hi}, 0")
    else:
        a(f"s_mov_b32 s{d}, s{base_lo}")
        a(f"s_mov_b32 s{d+1}, s{base_hi}")
    a(f"s_mov_b32 s{d+2}, {hex(nbytes)}")
    a(f"s_mov_b32 s{d+3}, 0x20000")

def rnd(a, dst, src):
    a(f"v_cvt_pk_bf16_f32 v{dst}, 0, v{src}")

def wave_scan_incl(a, v):
    for sh in (1, 2, 4, 8):
        a(f"v_add_u32_dpp v{v}, v{v}, v{v} row_shr:{sh} row_mask:0xf bank_mask:0xf bound_ctrl:0")
    a(f"v_add_u32_dpp v{v}, v{v}, v{v} row_bcast:15 row_mask:0xa bank_mask:0xf")
    a(f"v_add_u32_dpp v{v}, v{v}, v{v} row_bcast:31 row_mask:0xc bank_mask:0xf")

import os
DEBUG = bool(int(os.environ.get("PN_DEBUG", "0")))
WS_DBG = 0x2000000
def stamp(a, idx):
    if not DEBUG: return
    a("s_memrealtime s[100:101]")
    a("s_waitcnt lgkmcnt(0)")
    a(f"s_mov_b32 s{88+idx}, s100")
def stamp_flush(a, area, vtid_wave_sgpr, ws_lo=8, ws_hi=9):
    if not DEBUG: return
    a("s_mov_b64 exec, -1")
    a("v_mbcnt_lo_u32_b32 v10, -1, 0")
    a("v_mbcnt_hi_u32_b32 v10, -1, v10")
    a("v_mov_b32 v11, 0")
    for i in range(8):
        a(f"v_writelane_b32 v11, s{88+i}, {i}")
    a(f"s_add_u32 s96, s{ws_lo}, {hex(WS_DBG + area * 0x100000)}")
    a(f"s_addc_u32 s97, s{ws_hi}, 0")
    a("s_mov_b32 s98, 0x100000")
    a("s_mov_b32 s99, 0x20000")
    a("s_lshl_b32 s100, s2, 3")
    a(f"s_add_u32 s100, s100, s{vtid_wave_sgpr}")
    a("s_lshl_b32 s100, s100, 5")
    a("v_lshlrev_b32 v12, 2, v10")
    a("v_add_u32 v12, s100, v12")
    a("v_cmp_gt_u32 vcc, 8, v10")
    a("s_and_saveexec_b64 s[100:101], vcc")
    a("buffer_store_dword v11, v12, s[96:99], 0 offen")
    a("s_waitcnt vmcnt(0)")
```

```python
import sys
sys.path.insert(0, 'dev')
from asmlib import Asm
from gen_common import *
import gen1b as gen_k1
import importlib, os
gen_k2 = importlib.import_module(os.environ.get("PN_K2", "gen7"))

HEADER = """; PaiNN message passing (gather / scatter) for gfx950 -- generated by dev/gen.py (hand-written generator)
; @launch kernel=pn_prep_kernel grid=({g1},1,1) block=(256,1,1) lds={l1}
; @launch kernel=pn_main_kernel grid=(256,1,1) block=(512,1,1) lds={l2}
.amdgcn_target "amdgcn-amd-amdhsa--gfx950"
.text
"""
def kd(name, vgpr, sgpr):
    return f""".amdhsa_kernel {name}
  .amdhsa_next_free_vgpr {vgpr}
  .amdhsa_next_free_sgpr {sgpr}
  .amdhsa_accum_offset {((vgpr+3)//4)*4}
  .amdhsa_group_segment_fixed_size 0
  .amdhsa_kernarg_size 88
  .amdhsa_user_sgpr_count 2
  .amdhsa_user_sgpr_kernarg_segment_ptr 1
  .amdhsa_system_sgpr_workgroup_id_x 1
.end_amdhsa_kernel
"""
def main(out):
    a1 = Asm(); gen_k1.gen_k1(a1); n1 = a1.pad_hazards()
    a2 = Asm(); gen_k2.gen_k2(a2); n2 = a2.pad_hazards()
    txt = HEADER.format(g1=K1_GRID, l1=gen_k1.K1_LDS, l2=gen_k2.L_END)
    txt += ".globl pn_prep_kernel\n.p2align 8\n.type pn_prep_kernel,@function\n" + a1.text()
    txt += ".globl pn_main_kernel\n.p2align 8\n.type pn_main_kernel,@function\n" + a2.text()
    txt += '.section .rodata,"a"\n.p2align 6\n' + kd("pn_prep_kernel", 128, 102 if DEBUG else 64) + '.p2align 6\n' + kd("pn_main_kernel", 256, 102)
    open(out, 'w').write(txt)
    print("nops inserted", n1, n2, "instrs", len(a1.items), len(a2.items), "LDS", gen_k2.L_END)
if __name__ == '__main__':
    main(sys.argv[1] if len(sys.argv) > 1 else 'gather_scatter__molecular_angular_painn__graph.s')
```

```python
import re

REG_RE = re.compile(r'^(-|abs\()?\s*([vsa])(\d+)\)?$')
RNG_RE = re.compile(r'^(-)?([vsa])\[(\d+):(\d+)\]$')

def regs_of(tok):
    tok = tok.strip()
    m = RNG_RE.match(tok)
    if m:
        return [(m.group(2), i) for i in range(int(m.group(3)), int(m.group(4)) + 1)]
    m = REG_RE.match(tok)
    if m:
        return [(m.group(2), int(m.group(3)))]
    if tok in ('vcc',): return [('s', 'vcc')]
    if tok in ('vcc_lo', 'vcc_hi'): return [('s', 'vcc')]
    if tok == 'exec': return [('s', 'exec')]
    if tok == 'm0': return [('s', 'm0')]
    return []

TRANS = ('v_exp_f32', 'v_log_f32', 'v_rcp_f32', 'v_rsq_f32', 'v_sqrt_f32', 'v_sin_f32', 'v_cos_f32')

class Ins:
    __slots__ = ('text', 'op', 'cls', 'vw', 'vr', 'sw', 'sr', 'dpp', 'target', 'label', 'mfma_c', 'mfma_ab', 'passes', 'nops')
    def __init__(self, text):
        self.text = text
        self.label = None; self.target = None
        self.vw = set(); self.vr = set(); self.sw = set(); self.sr = set()
        self.dpp = False; self.mfma_c = set(); self.mfma_ab = set(); self.passes = 0; self.nops = 1
        t = text.split(';')[0].strip()
        if t.endswith(':'):
            self.label = t[:-1]; self.cls = 'label'; self.op = None; return
        if t == '' or t.startswith('.'):
            self.cls = 'none'; self.op = None; return
        parts = t.split(None, 1)
        op = parts[0]; self.op = op
        rest = parts[1] if len(parts) > 1 else ''
        rest_full = rest
        rest = re.sub(r'\b(op_sel|op_sel_hi|quad_perm|neg_lo|neg_hi):\[[^\]]*\]', '', rest).strip()
        ops = [x.strip() for x in rest.split(',')] if rest else []
        mods = ''
        if ops:
            lp = ops[-1].split(None, 1)
            if len(lp) > 1 and not lp[0].startswith('abs('):
                ops[-1] = lp[0]; mods = lp[1]
        def V(toks): return set(r for k in toks for r in regs_of(k) if r[0] in 'va')
        def S(toks): return set(r for k in toks for r in regs_of(k) if r[0] == 's')
        if op.startswith('v_mfma'):
            self.cls = 'mfma'
            self.vw = V(ops[0:1]); self.mfma_ab = V(ops[1:3]); self.mfma_c = V(ops[3:4]); self.vr = self.mfma_ab | self.mfma_c
            self.passes = 8 if '32x32' in op else 4
        elif op.startswith('v_'):
            self.cls = 'valu'
            self.dpp = ('row_' in rest_full or 'quad_perm' in rest_full or 'wave_' in rest_full)
            if op.startswith('v_cmp'):
                self.sw = S(ops[0:1]); self.vr = V(ops[1:]); self.sr = S(ops[1:])
                if op.startswith('v_cmpx'): self.sw.add(('s', 'exec'))
            elif op.startswith('v_readlane') or op.startswith('v_readfirstlane'):
                self.sw = S(ops[0:1]); self.vr = V(ops[1:2]); self.sr = S(ops[2:])
            elif op.startswith('v_permlane16_swap') or op.startswith('v_permlane32_swap'):
                self.vw = V(ops[0:2]); self.vr = V(ops[0:2])
            elif op.startswith(('v_add_co', 'v_sub_co', 'v_addc_co', 'v_subb_co', 'v_subrev_co', 'v_div_scale')):
                self.vw = V(ops[0:1]); self.sw = S(ops[1:2]); self.vr = V(ops[2:]); self.sr = S(ops[2:])
            else:
                self.vw = V(ops[0:1]); self.vr = V(ops[1:]); self.sr = S(ops[1:])
                if op.startswith(('v_fmac', 'v_mac', 'v_writelane', 'v_pk_fmac', 'v_dot2c')) or self.dpp or 'sdwa' in op:
                    self.vr |= self.vw
        elif op.startswith('ds_'):
            self.cls = 'ds'
            if op.startswith(('ds_read', 'ds_bpermute', 'ds_permute', 'ds_swizzle')) or '_rtn' in op:
                self.vw = V(ops[0:1]); self.vr = V(ops[1:])
            else:
                self.vr = V(ops)
        elif op.startswith(('buffer_', 'global_')):
            self.cls = 'vmem'
            islds = re.search(r'\blds\b', mods) is not None
            if op.startswith('buffer_load') or op.startswith('global_load'):
                if islds:
                    self.vr = V(ops[0:1]); self.sr = S(ops[1:]) | {('s', 'm0')}
                else:
                    self.vw = V(ops[0:1]); self.vr = V(ops[1:2]); self.sr = S(ops[2:])
            else:
                self.vr = V(ops[0:2]); self.sr = S(ops[2:])
                if 'atomic' in op and 'sc0' in mods: self.vw = V(ops[0:1])
        elif op.startswith('s_'):
            self.cls = 'salu'
            if op in ('s_branch',) or op.startswith('s_cbranch'):
                self.target = ops[0]
                if op.startswith('s_cbranch_vcc'): self.sr = {('s', 'vcc')}
                if op.startswith('s_cbranch_exec'): self.sr = {('s', 'exec')}
            elif op == 's_nop':
                self.nops = int(ops[0], 0) + 1
            elif op.startswith(('s_cmp', 's_bitcmp', 's_waitcnt', 's_barrier', 's_endpgm', 's_setprio', 's_sleep')):
                self.sr = S(ops)
            elif op.startswith('s_load'):
                self.cls = 'smem'; self.sw = S(ops[0:1]); self.sr = S(ops[1:2])
            else:
                self.sw = S(ops[0:1]); self.sr = S(ops[1:])
                if 'saveexec' in op: self.sw.add(('s', 'exec'))
        else:
            raise ValueError("unknown op: " + text)

def is_wide_store(ins):
    return ins.cls == 'vmem' and ('store_dwordx3' in ins.op or 'store_dwordx4' in ins.op)

def need(prod, cons):
    n = 0
    pc, cc = prod.cls, cons.cls
    if pc == 'valu':
        if cc == 'mfma' and (prod.vw & cons.vr): n = max(n, 2)
        if cc == 'valu':
            if cons.dpp and (prod.vw & cons.vr): n = max(n, 2)
            if cons.op.startswith('v_permlane') and (prod.vw & cons.vr): n = max(n, 2)
            if cons.op.startswith(('v_readlane', 'v_readfirstlane')) and (prod.vw & cons.vr): n = max(n, 1)
            if prod.sw & cons.sr:
                n = max(n, 4 if cons.op.startswith(('v_readlane', 'v_writelane')) else 2)
            if ('s', 'exec') in prod.sw:
                if cons.dpp: n = max(n, 5)
                if cons.op.startswith(('v_readlane', 'v_readfirstlane', 'v_writelane', 'v_permlane')): n = max(n, 4)
            if prod.op in TRANS and cons.op not in TRANS and (prod.vw & cons.vr): n = max(n, 1)
            if 'sdwa' in prod.op and 'dst_sel:DWORD' not in prod.text and (prod.vw & (cons.vr | cons.vw)): n = max(n, 1)
        if cc == 'vmem' and (prod.sw & cons.sr): n = max(n, 5)
        if cc == 'salu' and (prod.sw & cons.sr): n = max(n, 2)
        if cc == 'mfma' and ('s', 'exec') in prod.sw: n = max(n, 4)
    if pc == 'mfma':
        p = prod.passes
        raw = {4: 8, 8: 12}[p]; ovl = {4: 6, 8: 10}[p]; war = {4: 3, 8: 7}[p]
        if cc == 'mfma':
            if prod.vw & cons.mfma_ab: n = max(n, raw)
            if prod.vw & cons.mfma_c and prod.vw != cons.mfma_c: n = max(n, ovl)
            if (prod.vw & cons.vw) and not (prod.vw == cons.vw and cons.mfma_c == cons.vw): n = max(n, raw)
        elif cc in ('valu', 'ds', 'vmem'):
            if prod.vw & (cons.vr | cons.vw): n = max(n, raw)
            if cc == 'valu' and (prod.mfma_c & cons.vw): n = max(n, war)
            if cc in ('ds', 'vmem') and (prod.mfma_c & cons.vw): n = max(n, war)
    if pc == 'salu':
        if ('s', 'm0') in prod.sw and cc == 'vmem' and ('s', 'm0') in cons.sr: n = max(n, 1)
    if is_wide_store(prod) and cc in ('valu', 'mfma', 'ds', 'vmem') and (prod.vr & cons.vw):
        n = max(n, 2)
    return n

class Asm:
    def __init__(self):
        self.items = []
    def __call__(self, text):
        for line in text.split('\n'):
            line = line.strip()
            if line == '': continue
            self.items.append(Ins(line))
    def uid(self):
        self._uid = getattr(self, '_uid', 0) + 1
        return str(self._uid)
    def last_uid(self):
        return str(self._uid)
    def label(self, name):
        self.items.append(Ins(name + ':'))
    def raw(self, text):
        x = Ins('')
        x.text = text
        self.items.append(x)
    def pad_hazards(self, window=14):
        inserted = 0
        start = 0
        while True:
            items = self.items
            labels = {it.label: i for i, it in enumerate(items) if it.label}
            preds = {}
            n = len(items)
            for i, it in enumerate(items):
                if it.cls in ('label', 'none'):
                    preds.setdefault(i + 1, []).append(i)
                    continue
                if it.target is not None:
                    if it.target in labels:
                        preds.setdefault(labels[it.target], []).append(i)
                    if it.op != 's_branch':
                        preds.setdefault(i + 1, []).append(i)
                elif it.op in ('s_endpgm', 's_setpc_b64'):
                    pass
                else:
                    preds.setdefault(i + 1, []).append(i)
            fix = None
            for i in range(start, n):
                it = items[i]
                if it.cls in ('label', 'none', 'smem'): continue
                worst = 0
                stack = [(p, 0) for p in preds.get(i, [])]
                seen = {}
                while stack:
                    j, dist = stack.pop()
                    if dist >= window: continue
                    if seen.get(j, 99) <= dist: continue
                    seen[j] = dist
                    pj = items[j]
                    if pj.cls in ('label', 'none'):
                        for p in preds.get(j, []): stack.append((p, dist))
                        continue
                    nd = need(pj, it)
                    if nd > dist: worst = max(worst, nd - dist)
                    for p in preds.get(j, []): stack.append((p, dist + pj.nops))
                if worst > 0:
                    fix = (i, worst); break
            if fix is None: break
            i, w = fix
            start = i
            self.items.insert(i, Ins('s_nop %d' % (w - 1)))
            inserted += 1
        return inserted
    def text(self):
        out = []
        for it in self.items:
            if it.cls == 'label': out.append(it.text)
            else: out.append('  ' + it.text)
        return '\n'.join(out) + '\n'
```

```python
import sys, os
sys.path.insert(0, 'dev')
from asmlib import Asm
from gen_common import *
import importlib
g = importlib.import_module(os.environ.get("PN_K2", "gen10"))
HEADER = """; PaiNN message passing (gather / scatter) for gfx950.  Emitted by a hand-written generator script (own code, no compiler output).
;
;
; @launch grid=(256,1,1) block=(512,1,1) lds={l2}
.amdgcn_target "amdgcn-amd-amdhsa--gfx950"
.text
"""
def main(out):
    a = Asm(); g.gen_k2(a); n = a.pad_hazards()
    k = g.KNAME
    txt = HEADER.format(l2=g.L_END)
    txt += f".globl {k}\n.p2align 8\n.type {k},@function\n" + a.text()
    txt += '.section .rodata,"a"\n.p2align 6\n' + f""".amdhsa_kernel {k}
  .amdhsa_next_free_vgpr 256
  .amdhsa_next_free_sgpr 102
  .amdhsa_accum_offset 256
  .amdhsa_group_segment_fixed_size 0
  .amdhsa_kernarg_size 88
  .amdhsa_user_sgpr_count 2
  .amdhsa_user_sgpr_kernarg_segment_ptr 1
  .amdhsa_system_sgpr_workgroup_id_x 1
.end_amdhsa_kernel
"""
    open(out, 'w').write(txt)
    print("nops", n, "instrs", len(a.items), "LDS", g.L_END)
main(sys.argv[1])
```
